```python
import torch

def _softmax(x, axis=-1):
    return torch.softmax(x, dim=axis)
def _gelu(x):
    return torch.nn.functional.gelu(x, approximate="tanh")
def _silu(x):
    return torch.nn.functional.silu(x)
def _sigmoid(x):
    return torch.sigmoid(x)
def _layernorm(x, axis=-1, eps=1e-5):
    m = x.mean(dim=axis, keepdim=True)
    v = x.var(dim=axis, keepdim=True, unbiased=False)
    return (x - m) / torch.sqrt(v + eps)
def _scatter_add(tgt, idx, src, axis=0):
    return tgt.clone().index_add_(axis, idx, src)
def _segment_sum(src, seg, n):
    out = torch.zeros((n,) + src.shape[1:], dtype=src.dtype)
    return out.index_add_(0, seg, src)
def _pad(x, pw):
    flat = tuple(v for pair in reversed(pw) for v in pair)
    return torch.nn.functional.pad(x, flat)

kernel_name = 'standalone__mha_block_cached__near_ridge'

def setup_inputs():

    _w = (lambda a: (lambda t: t.to(torch.bfloat16) if t.is_floating_point() else t)(torch.as_tensor(a)))
    B, Sq, D = 8, 80, 1024
    H, Sk, Dh = 32, 80, 128
    return {
        "x": _w((lambda *s: torch.randn(*s, dtype=torch.bfloat16) * 0.8)(B, Sq, D)),
        "k_cache": _w((lambda *s: torch.randn(*s, dtype=torch.bfloat16) * 0.8)(B, H, Sk, Dh)),
        "v_cache": _w((lambda *s: torch.randn(*s, dtype=torch.bfloat16) * 0.05)(B, H, Sk, Dh)),
        "wq": _w((lambda *s: torch.randn(*s, dtype=torch.bfloat16) * 0.8)(D, H * Dh) * (D ** -0.5)),
        "wo": _w((lambda *s: torch.randn(*s, dtype=torch.bfloat16) * 0.05)(H * Dh, D) * ((H * Dh) ** -0.5)),
    }

def reference(x, k_cache, v_cache, wq, wo):
    B, Sq, D = x.shape
    H, Dh = 32, 128
    q = (lambda x, *d: x.permute(*d))((x @ wq).reshape(B, Sq, H, Dh), 0, 2, 1, 3)
    scores = torch.einsum("bhqd,bhkd->bhqk", q, k_cache) * (Dh ** -0.5)
    p = _softmax(scores, axis=-1)
    o = torch.einsum("bhqk,bhkd->bhqd", p, v_cache)
    return (lambda x, *d: x.permute(*d))(o, 0, 2, 1, 3).reshape(B, Sq, H * Dh) @ wo
```

```python
import re


class Asm:
    def __init__(self):
        self.lines = []

    def __call__(self, text):
        for ln in text.split("\n"):
            ln = ln.strip()
            if ln:
                self.lines.append(ln)

    def label(self, name):
        self.lines.append(name + ":")

    def text(self):
        out = []
        for ln in self.lines:
            if ln.endswith(":") or ln.startswith(".") or ln.startswith(";"):
                out.append(ln)
            else:
                out.append("    " + ln)
        return "\n".join(out) + "\n"


_REG = re.compile(r"(-?\|?)\b([vas])(\d+)\b|\b([vas])\[(\d+):(\d+)\]")


def _regs(op):
    res = set()
    for m in _REG.finditer(op):
        if m.group(2):
            res.add((m.group(2), int(m.group(3))))
        else:
            for i in range(int(m.group(5)), int(m.group(6)) + 1):
                res.add((m.group(4), i))
    if re.search(r"\bvcc\b", op):
        res.add(("s", "vcc"))
    if re.search(r"\bm0\b", op):
        res.add(("s", "m0"))
    return res


TRANS = ("v_exp_f32", "v_log_f32", "v_rcp_f32", "v_rsq_f32", "v_sqrt_f32")


def _parse(ln):
    parts = ln.split(None, 1)
    name = parts[0]
    ops = [o.strip() for o in parts[1].split(",")] if len(parts) > 1 else []
    kind = "other"
    dst, src = set(), set()
    if name.startswith("v_mfma"):
        kind = "mfma"
        dst = _regs(ops[0])
        src = _regs(ops[1]) | _regs(ops[2])
        return dict(name=name, kind=kind, dst=dst, ab=src, c=_regs(ops[3]), src=src | _regs(ops[3]))
    if name.startswith("v_cmp"):
        kind = "valu"
        dst = _regs(ops[0])
        src = set().union(*[_regs(o) for o in ops[1:]])
    elif name.startswith("v_permlane"):
        kind = "perm"
        dst = _regs(ops[0]) | _regs(ops[1])
        src = set(dst)
    elif name.startswith("v_readfirstlane") or name.startswith("v_readlane"):
        kind = "rdlane"
        dst = _regs(ops[0])
        src = set().union(*[_regs(o) for o in ops[1:]])
    elif name.startswith("v_"):
        kind = "trans" if name.split("_e")[0] in TRANS or name in TRANS else "valu"
        dst = _regs(ops[0])
        src = set().union(*[_regs(o) for o in ops[1:]]) if len(ops) > 1 else set()
        if name.startswith("v_fmac") or name.startswith("v_writelane"):
            src |= dst
        if name.startswith("v_cndmask") and len(ops) == 3:
            src.add(("s", "vcc"))
    elif name.startswith("ds_read"):
        kind = "dsr"
        dst = _regs(ops[0])
        src = _regs(ops[1].split()[0])
    elif name.startswith("ds_write"):
        kind = "dsw"
        src = set().union(*[_regs(o.split()[0]) for o in ops])
    elif name.startswith("buffer_load"):
        kind = "vml"
        if " lds" in ln:
            src = set().union(*[_regs(o.split()[0]) for o in ops]) | {("s", "m0")}
            kind = "dma"
        else:
            dst = _regs(ops[0])
            src = set().union(*[_regs(o.split()[0]) for o in ops[1:]])
    elif name.startswith("buffer_store") or name.startswith("buffer_atomic"):
        kind = "vms"
        src = set().union(*[_regs(o.split()[0]) for o in ops])
        wide = "x4" in name or "x3" in name
        return dict(name=name, kind=kind, dst=set(), src=src, data=_regs(ops[0]) if wide else set())
    elif name.startswith("s_"):
        kind = "salu"
        if ops and not name.startswith(("s_cmp", "s_waitcnt", "s_cbranch", "s_branch", "s_nop", "s_barrier", "s_bitcmp", "s_setprio", "s_sleep")):
            dst = _regs(ops[0])
            src = set().union(*[_regs(o) for o in ops[1:]]) if len(ops) > 1 else set()
    return dict(name=name, kind=kind, dst=dst, src=src)


def _states(ins):
    if ins["name"] == "s_nop":
        return ins["n"] + 1
    return 1


def check_hazards(lines):
    prog, labels = [], {}
    for ln in lines:
        if ln.startswith(";") or ln.startswith("."):
            continue
        if ln.endswith(":"):
            labels[ln[:-1]] = len(prog)
            continue
        ins = _parse(ln.split(";")[0].strip())
        ins["text"] = ln
        if ins["name"] == "s_nop":
            ins["n"] = int(ln.split()[1])
        prog.append(ins)

    def succ(i):
        ins = prog[i]
        n = ins["name"]
        if n == "s_endpgm":
            return []
        if n == "s_branch":
            return [labels[ins["text"].split()[1]]]
        if n.startswith("s_cbranch"):
            return [i + 1, labels[ins["text"].split()[1]]]
        return [i + 1] if i + 1 < len(prog) else []

    VAL = ("valu", "trans", "perm", "rdlane")
    problems = set()

    def need(p, c):
        k1, k2 = p["kind"], c["kind"]
        w = 0
        vecs = lambda s: {r for r in s if r[0] in "va"}
        sg = lambda s: {r for r in s if r[0] == "s"}
        if k1 in VAL and k2 == "mfma" and vecs(p["dst"]) & c["src"]:
            w = max(w, 2)
        if k1 == "mfma":
            d = p["dst"]
            if k2 == "mfma":
                if d & c["ab"]:
                    w = max(w, 8)
                if d & c["c"] and (c["c"] != d or c["name"] != p["name"]):
                    w = max(w, 6)
            elif k2 in VAL and (d & c["src"] or d & c["dst"]):
                w = max(w, 8)
            elif k2 in ("dsw", "vms", "vml", "dma", "dsr") and (d & c["src"] or d & c["dst"]):
                w = max(w, 8)
            if k2 in VAL and p["c"] & c["dst"]:
                w = max(w, 3)
        if k1 == "trans" and k2 in ("valu", "perm", "rdlane") and p["dst"] & c["src"]:
            w = max(w, 1)
        if k1 in VAL and k2 == "perm" and vecs(p["dst"]) & c["src"]:
            w = max(w, 2)
        if k1 in VAL and k2 == "rdlane" and vecs(p["dst"]) & c["src"]:
            w = max(w, 1)
        if k1 in VAL and k2 in ("vml", "vms", "dma") and sg(p["dst"]) & c["src"]:
            w = max(w, 5)
        if k1 in VAL and k2 in VAL and sg(p["dst"]) & c["src"]:
            w = max(w, 4 if c["name"].startswith(("v_readlane", "v_writelane")) else 2)
        if k1 == "salu" and ("s", "m0") in p["dst"] and k2 == "dma":
            w = max(w, 1)
        if k1 == "vms" and k2 in VAL and p.get("data", set()) & c["dst"]:
            w = max(w, 2)
        if k1 == "vms" and k2 in ("dsr", "vml") and p.get("data", set()) & c["dst"]:
            w = max(w, 1)
        return w

    for i, p in enumerate(prog):
        if p["kind"] not in VAL + ("mfma", "salu", "vms"):
            continue
        stack = [(j, 0) for j in succ(i)]
        seen = {}
        while stack:
            j, dist = stack.pop()
            if dist >= 9 or seen.get(j, 99) <= dist:
                continue
            seen[j] = dist
            c = prog[j]
            w = need(p, c)
            if w > dist:
                problems.add((i, j, w, dist, p["text"], c["text"]))
            for k in succ(j):
                stack.append((k, dist + _states(c)))
    return sorted(problems)
```

```python
import sys, math, struct
sys.path.insert(0, "work")
from asmlib import Asm, check_hazards

KNAME = "standalone__mha_block_cached__near_ridge_kernel"

HEADER = """; Kernarg layout for this problem (64 bytes, ptrs only, base s[0:1]):
;   offset  40: d_out     shape=(8, 80, 1024) dtype=bfloat16 (2 bytes/elem)
; One workgroup per (batch, head): Q projection, attention, then a 80x128 tile of the output
"""

SLOT, WOFF = 26624, 10240
KB, VB = 106496, 126976
QX = 86016
UNIT0 = [18, 4, 6, 8, 0, 2, 10, 12, 14, 16, 18, 4, 6, 8, 0, 2]
OPOS = [81920, 0, 32768, 114688, 81920]
SCR = [147456, 155648]
F_OFF, IB_OFF, TS_OFF = 0x500000, 0x600000, 0xE00000
IB_PER = 30720
SPIN = 1 << 16

sX, sW, sK, sV, sWo, sO, sF, sIB, sOut, sDbg, sTS = 20, 24, 28, 32, 36, 40, 44, 48, 52, 56, 60
sWave, sXc, sHH, sB, sH, sG, sJ, sRot, sI, sSlot = range(64, 74)
sT0, sT1, sT2, sT3, sT4, sT5, sT6, sT7 = range(74, 82)
sC, sRb, sKH, sNQ, sLX, sLW, sCh = range(82, 89)
sOo = 89
sTile, sOwnBase = 93, 94
sTm = 96

vLane, vL15, vG, vL16, vTS = 1, 2, 3, 4, 5


def srd(r):
    return f"s[{r}:{r+3}]"


def vr(r, n=1):
    return f"v{r}" if n == 1 else f"v[{r}:{r+n-1}]"


def ar(r, n=1):
    return f"a{r}" if n == 1 else f"a[{r}:{r+n-1}]"


def gen(px="", pw="nt", pkv="nt", pwo="nt", rot="A", kv0=2, ts=False, ws_off=0, dbg=0):
    a = Asm()
    cexp = struct.unpack("<I", struct.pack("<f", math.log2(math.e) / math.sqrt(128.0)))[0]

    def stamp(k):
        if ts:
            a(f"s_memtime s[{sTm}:{sTm+1}]\ns_waitcnt lgkmcnt(0)\nv_writelane_b32 v{vTS}, s{sTm}, {k}")

    def stamp_i(base):
        if ts:
            a(f"s_memtime s[{sTm}:{sTm+1}]\ns_add_u32 m0, s{sI}, {base}\ns_waitcnt lgkmcnt(0)\nv_writelane_b32 v{vTS}, s{sTm}, m0")

    def dump(regs, slot):
        if not dbg:
            return
        a(f"s_add_u32 s60, s18, 0x1000000\ns_addc_u32 s61, s19, 0\ns_mov_b32 s62, 0x4000000\ns_mov_b32 s63, 0x20000")
        a(f"s_lshl_b32 s{sT7}, s2, 3\ns_add_u32 s{sT7}, s{sT7}, s{sWave}\ns_lshl_b32 s{sT7}, s{sT7}, 15\ns_add_u32 s{sT7}, s{sT7}, {slot*256}")
        a(f"v_lshlrev_b32 v127, 2, v{vLane}\ns_nop 7\ns_waitcnt lgkmcnt(0)")
        for k, r in enumerate(regs):
            a(f"buffer_store_dword {r}, v127, s[60:63], s{sT7} offen\ns_add_u32 s{sT7}, s{sT7}, 256")
        a("s_waitcnt vmcnt(0)")

    def mk_srd(r, ptr, off, size):
        if off is None:
            a(f"s_mov_b32 s{r}, s{ptr}\ns_mov_b32 s{r+1}, s{ptr+1}")
        else:
            a(f"s_add_u32 s{r}, s{ptr}, {off}\ns_addc_u32 s{r+1}, s{ptr+1}, 0")
        a(f"s_mov_b32 s{r+2}, {size}\ns_mov_b32 s{r+3}, 0x20000")

    def late_srds():
        a(f"s_lshl_b32 s{sT0}, s{sB}, 5\ns_add_u32 s{sT0}, s{sT0}, s{sH}\ns_mul_i32 s{sT0}, s{sT0}, 20480")
        mk_srd(sK, 6, f"s{sT0}", 20480)
        mk_srd(sV, 8, f"s{sT0}", 20480)
        a(f"s_lshl_b32 s{sT0}, s{sG}, 21\ns_lshl_b32 s{sT1}, s{sJ}, 8\ns_add_u32 s{sT0}, s{sT0}, s{sT1}\ns_sub_u32 s{sT1}, 0x800000, s{sT0}")
        mk_srd(sWo, 12, f"s{sT0}", f"s{sT1}")
        a(f"s_lshl_b32 s{sT2}, s{sB}, 2\ns_add_u32 s{sT2}, s{sT2}, s{sG}")
        a(f"s_mul_i32 s{sT0}, s{sT2}, 163840\ns_add_u32 s{sT0}, s{sT0}, {ws_off}")
        mk_srd(sO, 18, f"s{sT0}", 163840)
        a(f"s_lshl_b32 s{sT0}, s{sT2}, 8\ns_add_u32 s{sT0}, s{sT0}, {ws_off + F_OFF}")
        mk_srd(sF, 18, f"s{sT0}", 256)
        mk_srd(sIB, 18, ws_off + IB_OFF, 256 * IB_PER)
        mk_srd(sOut, 14, None, 1310720)
        mk_srd(sDbg, 16, None, 256)
        if ts:
            mk_srd(sTS, 18, ws_off + TS_OFF, 256 * 8 * 256)
        a(f"s_mul_i32 s{sOwnBase}, s2, {IB_PER}")
        a(f"s_lshl_b32 s{sRb}, s{sB}, 1")
        a(f"s_lshr_b32 s{sKH}, s{sWave}, 2\ns_and_b32 s{sNQ}, s{sWave}, 3")
        a(f"s_mov_b32 s{sC}, {cexp:#x}")

    a(f"; @launch grid=(256,1,1) block=(512,1,1) lds=163840")
    a('.amdgcn_target "amdgcn-amd-amdhsa--gfx950"\n.text')
    a(f".globl {KNAME}\n.p2align 8\n.type {KNAME},@function")
    a.label(KNAME)
    a("s_cmp_ge_u32 s2, 256\ns_cbranch_scc1 L_end")
    a("s_load_dwordx16 s[4:19], s[0:1], 0")
    if ts:
        a(f"v_mov_b32 v{vTS}, 0\ns_memrealtime s[98:99]\ns_memtime s[{sTm}:{sTm+1}]")
    a(f"v_lshrrev_b32 v6, 6, v0\nv_and_b32 v{vLane}, 63, v0")
    a(f"v_readfirstlane_b32 s{sWave}, v6")
    a(f"v_and_b32 v{vL15}, 15, v0\nv_lshrrev_b32 v{vG}, 4, v{vLane}\nv_lshlrev_b32 v{vL16}, 4, v{vLane}")
    a(f"s_and_b32 s{sXc}, s2, 7\ns_bfe_u32 s{sHH}, s2, 0x20003\ns_lshr_b32 s{sB}, s2, 5")
    a(f"s_lshl_b32 s{sH}, s{sXc}, 2\ns_add_u32 s{sH}, s{sH}, s{sHH}")
    a(f"s_lshr_b32 s{sG}, s{sXc}, 1\ns_and_b32 s{sJ}, s{sH}, 7")
    a(f"s_cmp_lt_u32 s{sWave}, 4\ns_cbranch_scc1 L_compute")

    vX, vW, vWoD = 8, 11, 15
    a(f"s_sub_u32 s{sT7}, s{sWave}, 4")
    a(f"s_mul_i32 s{sT0}, s{sT7}, 20\nv_lshrrev_b32 v6, 3, v{vLane}\nv_add_u32 v6, s{sT0}, v6\nv_and_b32 v7, 7, v{vLane}")
    for i in range(3):
        a(f"v_add_u32 v20, {8*i}, v6\nv_bfe_u32 v21, v20, 1, 3\nv_xor_b32 v21, v21, v7\nv_lshlrev_b32 v21, 4, v21")
        a(f"v_lshl_add_u32 v21, v20, 11, v21\nv_subrev_u32 v{vX+i}, {1024*i}, v21")
    a(f"s_lshl_b32 s{sT0}, s{sT7}, 4\nv_add_u32 v6, s{sT0}, v{vG}")
    for i in range(4):
        a(f"v_add_u32 v20, {4*i}, v6\nv_add_u32 v21, {4*((i>>1)&1)}, v{vG}\nv_lshlrev_b32 v21, 1, v21\nv_xor_b32 v21, v21, v{vL15}")
        a(f"v_lshlrev_b32 v21, 4, v21\nv_lshl_add_u32 v21, v20, 13, v21\nv_subrev_u32 v{vW+i}, {1024*i}, v21")
    a(f"s_mul_i32 s{sLX}, s{sT7}, 2560\ns_lshl_b32 s{sLW}, s{sT7}, 12\ns_add_u32 s{sLW}, s{sLW}, {WOFF}")
    if rot == "A":
        a(f"s_lshl_b32 s{sCh}, s{sHH}, 1\ns_add_u32 s{sCh}, s{sCh}, s{sB}\ns_lshl_b32 s{sCh}, s{sCh}, 1\ns_and_b32 s{sCh}, s{sCh}, 15")
    elif rot == "B":
        a(f"s_add_u32 s{sCh}, s{sB}, s{sXc}\ns_lshl_b32 s{sCh}, s{sCh}, 1\ns_and_b32 s{sCh}, s{sCh}, 15")
    elif rot == "D":
        a(f"s_lshl_b32 s{sCh}, s{sB}, 1")
    else:
        a(f"s_mov_b32 s{sCh}, 0")
    a(f"s_mov_b32 s{sSlot}, {SLOT}")
    a(f"s_mul_i32 s{sT0}, s{sB}, 163840\ns_lshl_b32 s{sT1}, s{sH}, 8\ns_sub_u32 s{sT2}, 0x800000, s{sT1}")
    a("s_waitcnt lgkmcnt(0)")
    if ts:
        a(f"v_writelane_b32 v{vTS}, s{sTm}, 0\nv_writelane_b32 v{vTS}, s98, 62")
    mk_srd(sX, 4, f"s{sT0}", 163840)
    mk_srd(sW, 10, f"s{sT1}", f"s{sT2}")

    def issue_stage():
        a(f"s_add_u32 m0, s{sSlot}, s{sLX}\ns_lshl_b32 s{sT0}, s{sCh}, 7\ns_lshl_b32 s{sT1}, s{sCh}, 19")
        a(f"buffer_load_dwordx4 v{vX}, {srd(sX)}, s{sT0} offen {px} lds")
        a(f"buffer_load_dwordx4 v{vX+1}, {srd(sX)}, s{sT0} offen offset:1024 {px} lds")
        a("s_mov_b32 exec_hi, 0")
        a(f"buffer_load_dwordx4 v{vX+2}, {srd(sX)}, s{sT0} offen offset:2048 {px} lds")
        a(f"s_add_u32 m0, s{sSlot}, s{sLW}\ns_mov_b32 exec_hi, -1")
        for i in range(4):
            a(f"buffer_load_dwordx4 v{vW+i}, {srd(sW)}, s{sT1} offen offset:{1024*i} {pw} lds")
        a(f"s_add_u32 s{sCh}, s{sCh}, 1\ns_and_b32 s{sCh}, s{sCh}, 15")
        a(f"s_add_u32 s{sSlot}, s{sSlot}, {SLOT}\ns_cmp_eq_u32 s{sSlot}, {4*SLOT}\ns_cselect_b32 s{sSlot}, 0, s{sSlot}")

    for _ in range(3):
        issue_stage()
    late_srds()
    for i in range(4):
        a(f"v_add_u32 v20, {4*i}, v{vG}\nv_add_u32 v21, {4*(i&1)}, v{vG}\nv_lshlrev_b32 v21, 1, v21\nv_xor_b32 v21, v21, v{vL15}")
        a(f"v_lshlrev_b32 v21, 4, v21\nv_lshl_add_u32 v21, v20, 11, v21\nv_subrev_u32 v{vWoD+i}, {1024*i}, v21")
    a(f"s_mov_b32 s{sI}, 0\ns_waitcnt vmcnt(14)")
    a.label("L_lloop")
    a("s_barrier")
    stamp_i(1)
    issue_stage()
    a(f"s_add_u32 s{sI}, s{sI}, 1\ns_cmp_lt_u32 s{sI}, 13\ns_waitcnt vmcnt(14)\ns_cbranch_scc1 L_lloop")

    def wo_block(lds_s, m_s, kh_s):
        a(f"s_add_u32 s{sT0}, {m_s}, s{sRb}\ns_and_b32 s{sT0}, s{sT0}, 15\ns_lshl_b32 s{sT0}, s{sT0}, 16")
        a(f"s_lshl_b32 s{sT1}, {kh_s}, 20\ns_mov_b32 m0, {lds_s}\ns_add_u32 s{sT0}, s{sT0}, s{sT1}")
        for i in range(4):
            a(f"buffer_load_dwordx4 v{vWoD+i}, {srd(sWo)}, s{sT0} offen offset:{1024*i} {pwo} lds")
        a(f"s_add_u32 m0, {lds_s}, 4096\ns_add_u32 s{sT0}, s{sT0}, 32768")
        for i in range(4):
            a(f"buffer_load_dwordx4 v{vWoD+i}, {srd(sWo)}, s{sT0} offen offset:{1024*i} {pwo} lds")

    def wo_batch(bt):
        a(f"s_and_b32 s{sT2}, s{sWave}, 1\ns_bfe_u32 s{sT3}, s{sWave}, 0x10001")
        a(f"s_cmp_eq_u32 s{sT3}, 0\ns_cselect_b32 s{sT4}, {UNIT0[2*bt]}, {UNIT0[2*bt+1]}")
        a(f"s_add_u32 s{sT4}, s{sT4}, s{sT2}\ns_lshl_b32 s{sT4}, s{sT4}, 13\ns_add_u32 s{sT3}, s{sT3}, {2*bt}")
        wo_block(f"s{sT4}", f"s{sT3}", f"s{sT2}")

    a("s_barrier")
    stamp(14)
    wo_batch(0)
    a("s_waitcnt vmcnt(15)\ns_barrier")
    stamp(15)
    a("s_waitcnt vmcnt(8)\ns_barrier")
    stamp(16)
    wo_batch(1)
    a("s_barrier")
    stamp(17)
    wo_batch(2)
    a(f"s_cmp_eq_u32 s{sWave}, 4\ns_cbranch_scc1 L_attn")
    a(f"s_cmp_lg_u32 s{sWave}, 5\ns_cbranch_scc1 L_ld_wait")
    a(f"s_lshl_b32 s{sT0}, s{sB}, 4\nv_lshlrev_b32 v6, 2, v{vLane}\ns_mov_b64 exec, 15\ns_mov_b32 s{sT1}, 0")
    a.label("L_conf")
    a(f"buffer_load_dword v7, v6, {srd(sDbg)}, s{sT0} offen sc1\ns_add_u32 s{sT1}, s{sT1}, 1\ns_waitcnt vmcnt(0)")
    a(f"v_cmp_ne_u32 vcc, 8, v7\ns_cmp_gt_u32 s{sT1}, {SPIN}\ns_cbranch_scc1 L_conf_done\ns_cbranch_vccnz L_conf")
    a.label("L_conf_done")
    a("s_mov_b64 exec, -1")
    a.label("L_ld_wait")
    a("s_waitcnt vmcnt(0)\ns_branch L_barA")

    a.label("L_compute")
    vXa, vWa, cX, cW, vKd, vVd = 6, 8, 10, 12, 14, 15
    X0, W0, X1, W1, ACC = 16, 36, 44, 64, 72
    vSw = 112
    a(f"v_lshrrev_b32 v20, 1, v{vL15}\nv_xor_b32 v20, v20, v{vG}\nv_lshlrev_b32 v20, 4, v20\nv_lshl_add_u32 v{vXa}, v{vL15}, 7, v20")
    a(f"v_xor_b32 v{vXa+1}, 64, v{vXa}")
    a(f"v_bfe_u32 v20, v{vLane}, 2, 2\nv_and_b32 v21, 1, v{vG}\nv_lshl_add_u32 v21, v21, 2, v20\nv_lshlrev_b32 v{vSw}, 1, v21")
    a(f"s_lshl_b32 s{sT0}, s{sWave}, 2\nv_bfe_u32 v21, v{vLane}, 1, 1\nv_add_u32 v21, s{sT0}, v21\nv_xor_b32 v21, v21, v{vSw}")
    a(f"v_lshl_add_u32 v20, v{vG}, 3, v20\nv_lshlrev_b32 v20, 8, v20\nv_lshl_add_u32 v20, v21, 4, v20")
    a(f"v_and_b32 v21, 1, v{vLane}\nv_lshl_add_u32 v20, v21, 3, v20\nv_add_u32 v{vWa}, {WOFF}, v20\nv_xor_b32 v{vWa+1}, 32, v{vWa}")
    a(f"v_add_u32 v20, s{sT0}, v{vG}\nv_xor_b32 v21, v20, v{vL15}\nv_lshlrev_b32 v21, 4, v21\nv_lshl_add_u32 v{vKd}, v20, 8, v21")
    a(f"v_and_b32 v21, 7, v20\nv_lshlrev_b32 v21, 1, v21\nv_xor_b32 v21, v21, v{vL15}\nv_lshlrev_b32 v21, 4, v21\nv_lshl_add_u32 v{vVd}, v20, 8, v21")
    for r in range(X1, ACC + 40):
        a(f"v_mov_b32 v{r}, 0")
    a(f"s_mov_b32 s{sSlot}, {SLOT}")
    for k in range(2):
        a(f"v_add_u32 v{cX+k}, s{sSlot}, v{vXa+k}\nv_add_u32 v{cW+k}, s{sSlot}, v{vWa+k}")
    a("s_waitcnt lgkmcnt(0)")
    if ts:
        a(f"v_writelane_b32 v{vTS}, s{sTm}, 0\nv_writelane_b32 v{vTS}, s98, 62")
    late_srds()
    for r in range(16, 20):
        a(f"v_mov_b32 v{r}, -1")
    for i in range(8):
        a(f"s_add_u32 s{sT0}, s{sWave}, {4*i}\ns_min_u32 s{sT0}, s{sT0}, 29\ns_lshl_b32 s{sT0}, s{sT0}, 10\ns_add_u32 s{sT0}, s{sT0}, s{sOwnBase}")
        a(f"buffer_store_dwordx4 v[16:19], v{vL16}, {srd(sIB)}, s{sT0} offen sc1")
    a(f"s_cmp_lg_u32 s{sWave}, 0\ns_cbranch_scc1 L_noclear")
    a(f"v_lshlrev_b32 v20, 5, v{vLane}\nv_mov_b32 v21, 0\ns_lshl_b32 s{sT0}, s{sJ}, 2\ns_mov_b64 exec, 31")
    a(f"buffer_store_dword v21, v20, {srd(sF)}, s{sT0} offen sc1\ns_mov_b64 exec, -1")
    a.label("L_noclear")
    a(f"s_mov_b32 s{sI}, 0")

    def rd_set(X, W, s):
        r = []
        r.append(f"ds_read_b64_tr_b16 {vr(W,2)}, v{cW} offset:{8192*s}")
        r.append(f"ds_read_b64_tr_b16 {vr(W+2,2)}, v{cW} offset:{8192*s+1024}")
        r.append(f"ds_read_b128 {vr(X,4)}, v{cX+s}")
        r.append(f"ds_read_b64_tr_b16 {vr(W+4,2)}, v{cW+1} offset:{8192*s}")
        r.append(f"ds_read_b64_tr_b16 {vr(W+6,2)}, v{cW+1} offset:{8192*s+1024}")
        for t in range(1, 5):
            r.append(f"ds_read_b128 {vr(X+4*t,4)}, v{cX+s} offset:{2048*t}")
        return r

    def mm_set(X, W):
        return [f"v_mfma_f32_16x16x32_bf16 {vr(ACC+8*t+4*d,4)}, {vr(W+4*d,4)}, {vr(X+4*t,4)}, {vr(ACC+8*t+4*d,4)}"
                for t in range(5) for d in range(2)]

    a.label("L_cloop")
    a("s_barrier")
    r0, r1, m0_, m1_ = rd_set(X0, W0, 0), rd_set(X1, W1, 1), mm_set(X0, W0), mm_set(X1, W1)
    for k in range(10):
        if k < 9:
            a(r0[k])
        a(m1_[k])
    waits = {0: 6, 1: 5, 2: 5, 4: 6, 6: 7, 8: 8}
    for k in range(10):
        if k in waits:
            a(f"s_waitcnt lgkmcnt({waits[k]})")
        a(m0_[k])
        if k < 9:
            a(r1[k])
    a(f"s_add_u32 s{sSlot}, s{sSlot}, {SLOT}\ns_cmp_eq_u32 s{sSlot}, {4*SLOT}\ns_cselect_b32 s{sSlot}, 0, s{sSlot}")
    for k in range(2):
        a(f"v_add_u32 v{cX+k}, s{sSlot}, v{vXa+k}\nv_add_u32 v{cW+k}, s{sSlot}, v{vWa+k}")
    a(f"s_cmp_lg_u32 s{sI}, 1\ns_cbranch_scc1 L_c_nodrain\ns_waitcnt vmcnt(0)")
    a.label("L_c_nodrain")
    a(f"s_cmp_lg_u32 s{sI}, 2\ns_cbranch_scc1 L_c_noconf\ns_cmp_lg_u32 s{sWave}, 0\ns_cbranch_scc1 L_c_noconf")
    a(f"s_lshl_b32 s{sT0}, s{sB}, 2\ns_add_u32 s{sT0}, s{sT0}, s{sG}\ns_lshl_b32 s{sT0}, s{sT0}, 2")
    a(f"v_mov_b32 v113, 1\nv_mov_b32 v114, 0\ns_mov_b64 exec, 1")
    a(f"buffer_atomic_add v113, v114, {srd(sDbg)}, s{sT0} offen sc1\ns_mov_b64 exec, -1")
    a.label("L_c_noconf")
    a(f"s_sub_u32 s{sT0}, s{sI}, {kv0}\ns_cmp_ge_u32 s{sT0}, 5\ns_cbranch_scc1 L_c_nok")
    a(f"s_lshl_b32 s{sT0}, s{sT0}, 12\ns_lshl_b32 s{sT1}, s{sWave}, 10\ns_add_u32 s{sT1}, s{sT1}, s{sT0}\ns_add_u32 m0, s{sT1}, {KB}\ns_nop 0")
    a(f"buffer_load_dwordx4 v{vKd}, {srd(sK)}, s{sT0} offen {pkv} lds")
    a.label("L_c_nok")
    a(f"s_sub_u32 s{sT0}, s{sI}, {kv0+5}\ns_cmp_ge_u32 s{sT0}, 5\ns_cbranch_scc1 L_c_nov")
    a(f"s_lshl_b32 s{sT0}, s{sT0}, 12\ns_lshl_b32 s{sT1}, s{sWave}, 10\ns_add_u32 s{sT1}, s{sT1}, s{sT0}\ns_add_u32 m0, s{sT1}, {VB}\ns_nop 0")
    a(f"buffer_load_dwordx4 v{vVd}, {srd(sV)}, s{sT0} offen {pkv} lds")
    a.label("L_c_nov")
    a(f"s_add_u32 s{sI}, s{sI}, 1\ns_cmp_lt_u32 s{sI}, 16\ns_waitcnt lgkmcnt(0)\ns_cbranch_scc1 L_cloop")
    for m in m1_:
        a(m)
    stamp(1)
    a(f"s_lshl_b32 s{sT0}, s{sWave}, 10\ns_add_u32 s{sT0}, s{sT0}, {QX}\nv_add_u32 v6, s{sT0}, v{vL16}")
    for t in range(5):
        if t == 4:
            a("s_nop 3")
        for k in range(4):
            a(f"v_cvt_pk_bf16_f32 v{16+4*t+k}, v{ACC+8*t+2*k}, v{ACC+8*t+2*k+1}")
        a(f"ds_write_b128 v6, {vr(16+4*t,4)} offset:{4096*t}")
    a("s_waitcnt vmcnt(0) lgkmcnt(0)\ns_barrier")
    stamp(17)

    a.label("L_attn")
    vKa, vVa, Q, S, P, ONE, OA, SUM = 6, 100, 16, 32, 52, 62, 66, 98
    SUM = 108
    a(f"s_lshl_b32 s{sT0}, s{sWave}, 12\ns_add_u32 s{sT0}, s{sT0}, {QX}\nv_add_u32 v14, s{sT0}, v{vL16}")
    for s in range(4):
        a(f"ds_read_b128 {vr(Q+4*s,4)}, v14 offset:{1024*s}")
    a(f"v_lshrrev_b32 v14, 1, v{vG}\nv_xor_b32 v14, v14, v{vL15}\nv_lshlrev_b32 v14, 4, v14\nv_lshl_add_u32 v14, v{vL15}, 8, v14")
    a(f"v_and_b32 v15, 1, v{vG}\nv_lshl_add_u32 v14, v15, 3, v14\nv_add_u32 v{vKa}, {KB}, v14")
    for k in range(1, 8):
        a(f"v_xor_b32 v{vKa+k}, {32*k}, v{vKa}")

    def rdK(u):
        for s in range(4):
            for i2 in range(2):
                a(f"ds_read_b64 {ar(16*u+4*s+2*i2,2)}, v{vKa+2*s+i2} offset:{4096*u}")

    def vreg(dt):
        return 80 + 10 * dt if dt < 4 else 10 * (dt - 4)

    def rdV(dt):
        return [f"ds_read_b64_tr_b16 {ar(vreg(dt)+2*kb,2)}, v{vVa+dt} offset:{4096*kb}" for kb in range(5)]

    def mmS(u):
        for s in range(4):
            c = "0" if s == 0 else vr(S + 4 * u, 4)
            a(f"v_mfma_f32_16x16x32_bf16 {vr(S+4*u,4)}, {ar(16*u+4*s,4)}, {vr(Q+4*s,4)}, {c}")

    rdK(0)
    a(f"v_bfe_u32 v14, v{vLane}, 2, 2\nv_and_b32 v15, 1, v{vG}\nv_lshl_add_u32 v15, v15, 2, v14\nv_lshlrev_b32 v{vSw}, 1, v15")
    a(f"v_bfe_u32 v15, v{vLane}, 1, 1\nv_xor_b32 v15, v15, v{vSw}\nv_lshl_add_u32 v14, v{vG}, 2, v14\nv_lshlrev_b32 v14, 8, v14")
    a(f"v_lshl_add_u32 v14, v15, 4, v14\nv_and_b32 v15, 1, v{vLane}\nv_lshl_add_u32 v14, v15, 3, v14\nv_add_u32 v{vVa}, {VB}, v14")
    for k in range(1, 8):
        a(f"v_xor_b32 v{vVa+k}, {32*k}, v{vVa}")
    for k in range(4):
        a(f"v_mov_b32 v{ONE+k}, 0x3f803f80")
    a("s_waitcnt lgkmcnt(4)")
    rdK(1)
    a("s_waitcnt lgkmcnt(8)")
    mmS(0)
    for u in range(1, 4):
        a("s_waitcnt lgkmcnt(4)")
        rdK(u + 1)
        a("s_waitcnt lgkmcnt(8)")
        mmS(u)
    a("s_waitcnt lgkmcnt(4)")
    vq = [x for dt in range(8) for x in rdV(dt)]
    for x in vq[:8]:
        a(x)
    a("s_waitcnt lgkmcnt(8)")
    mmS(4)
    dump([f"v{Q+k}" for k in range(16)] + [f"v{S+k}" for k in range(20)], 0)
    vq = vq[8:]
    seq = []
    seq.append(f"v_max3_f32 v14, v{S}, v{S+1}, v{S+2}")
    seq.append(f"v_max3_f32 v15, v{S+3}, v{S+4}, v{S+5}")
    for k in range(6, 16, 4):
        seq.append(f"v_max3_f32 v14, v14, v{S+k}, v{S+k+1}")
        if k + 3 < 16:
            seq.append(f"v_max3_f32 v15, v15, v{S+k+2}, v{S+k+3}")
    seq.append("s_nop 0")
    seq.append(f"v_max3_f32 v15, v15, v{S+16}, v{S+17}")
    seq.append(f"v_max3_f32 v14, v14, v{S+18}, v{S+19}")
    seq.append("v_max_f32 v14, v14, v15")
    seq.append("v_mov_b32 v15, v14\ns_nop 1\nv_permlane32_swap_b32 v14, v15")
    seq.append("v_max_f32 v14, v14, v15")
    seq.append("v_mov_b32 v15, v14\ns_nop 1\nv_permlane16_swap_b32 v14, v15")
    seq.append("v_max_f32 v14, v14, v15")
    seq.append(f"v_mul_f32 v14, s{sC}, v14")
    for k in range(20):
        seq.append(f"v_fma_f32 v{S+k}, v{S+k}, s{sC}, -v14")
    for k in range(20):
        seq.append(f"v_exp_f32 v{S+k}, v{S+k}")
    seq.append("s_nop 0")
    for k in [8, 9, 0, 1, 2, 3, 4, 5, 6, 7]:
        seq.append(f"v_cvt_pk_bf16_f32 v{P+k}, v{S+2*k}, v{S+2*k+1}")
    for k, x in enumerate(seq):
        a(x)
        if vq and k >= 1 and k % 2 == 1:
            a(vq.pop(0))
    for x in vq:
        a(x)
    a("s_waitcnt lgkmcnt(0)")
    dump([f"v{S+k}" for k in range(20)] + [f"v{P+k}" for k in range(10)] + [f"a{vreg(0)+k}" for k in range(10)], 36)
    a(f"v_mfma_f32_16x16x16_bf16 {vr(SUM,4)}, {vr(ONE,2)}, {vr(P+8,2)}, 0")
    for dt in range(8):
        a(f"v_mfma_f32_16x16x16_bf16 {vr(OA+4*dt,4)}, {ar(vreg(dt)+8,2)}, {vr(P+8,2)}, 0")
    a(f"v_mfma_f32_16x16x32_bf16 {vr(SUM,4)}, {vr(ONE,4)}, {vr(P,4)}, {vr(SUM,4)}")
    a(f"v_mfma_f32_16x16x32_bf16 {vr(SUM,4)}, {vr(ONE,4)}, {vr(P+4,4)}, {vr(SUM,4)}")
    for dt in range(8):
        o = vr(OA + 4 * dt, 4)
        a(f"v_mfma_f32_16x16x32_bf16 {o}, {ar(vreg(dt),4)}, {vr(P,4)}, {o}")
        a(f"v_mfma_f32_16x16x32_bf16 {o}, {ar(vreg(dt)+4,4)}, {vr(P+4,4)}, {o}")
        if dt == 3:
            a(f"v_rcp_f32 v14, v{SUM}")
        if dt >= 4:
            d = dt - 4
            for r in range(4):
                a(f"v_mul_f32 v{OA+4*d+r}, v14, v{OA+4*d+r}")
    dump([f"v{SUM+k}" for k in range(4)] + ["v14"] + [f"v{OA+k}" for k in range(32)], 76)
    a(f"s_lshl_b32 s{sT0}, s{sWave}, 15\ns_lshl_b32 s{sT1}, s{sJ}, 12\ns_add_u32 s{sT0}, s{sT0}, s{sT1}")
    for v in range(4):
        for d in (2 * v, 2 * v + 1):
            if d >= 4:
                for r in range(4):
                    a(f"v_mul_f32 v{OA+4*d+r}, v14, v{OA+4*d+r}")
        for k in range(4):
            a(f"v_cvt_pk_bf16_f32 v{Q+4*v+k}, v{OA+8*v+2*k}, v{OA+8*v+2*k+1}")
        a(f"buffer_store_dwordx4 {vr(Q+4*v,4)}, v{vL16}, {srd(sO)}, s{sT0} offen offset:{1024*v} sc1")
    a("s_waitcnt vmcnt(4)")

    a.label("L_barA")
    vWoA = 22
    a(f"v_bfe_u32 v20, v{vLane}, 2, 2\nv_and_b32 v21, 1, v{vG}\nv_lshl_add_u32 v21, v21, 2, v20\nv_lshlrev_b32 v28, 1, v21")
    a(f"s_lshl_b32 s{sT0}, s{sNQ}, 2\nv_bfe_u32 v21, v{vLane}, 1, 1\nv_add_u32 v21, s{sT0}, v21\nv_xor_b32 v21, v21, v28")
    a(f"v_lshl_add_u32 v20, v{vG}, 2, v20\nv_lshlrev_b32 v20, 8, v20\nv_lshl_add_u32 v20, v21, 4, v20")
    a(f"v_and_b32 v21, 1, v{vLane}\nv_lshl_add_u32 v20, v21, 3, v20\ns_lshl_b32 s{sT0}, s{sKH}, 13\nv_add_u32 v{vWoA}, s{sT0}, v20")
    a(f"v_xor_b32 v{vWoA+1}, 32, v{vWoA}")
    for k in range(2):
        a(f"v_add_u32 v{vWoA+2+k}, 0x10000, v{vWoA+k}\nv_add_u32 v{vWoA+4+k}, 0x20000, v{vWoA+k}")
    a("s_barrier")
    stamp(18)

    def rd_wo(m):
        base = UNIT0[m] * 8192
        out = []
        for nt in range(2):
            for u in range(2):
                out.append(f"ds_read_b64_tr_b16 {ar(8*m+4*nt+2*u,2)}, v{vWoA+2*(base>>16)+nt} offset:{(base & 0xffff)+4096*u}")
        return out

    def wo_late(m):
        a(f"s_and_b32 s{sT2}, s{sWave}, 1\ns_add_u32 s{sT4}, s{sT2}, {UNIT0[m]}\ns_lshl_b32 s{sT4}, s{sT4}, 13")
        wo_block(f"s{sT4}", str(m), f"s{sT2}")

    a(f"s_cmp_ge_u32 s{sWave}, 6\ns_cbranch_scc1 L_wo_ld")
    for m in range(6):
        for x in rd_wo(m):
            a(x)
    a("s_waitcnt lgkmcnt(0)\ns_barrier\ns_barrier")
    stamp(19)
    for m in range(6, 10):
        for x in rd_wo(m):
            a(x)
    a(f"s_cmp_eq_u32 s{sWave}, 5\ns_cbranch_scc1 L_noflag")
    a(f"s_lshl_b32 s{sT0}, s{sWave}, 5\ns_lshl_b32 s{sT1}, s{sJ}, 2\ns_add_u32 s{sT0}, s{sT0}, s{sT1}")
    a(f"v_mov_b32 v20, 1\nv_mov_b32 v21, 0\ns_mov_b64 exec, 1\ns_waitcnt vmcnt(0)")
    a(f"buffer_store_dword v20, v21, {srd(sF)}, s{sT0} offen sc1\ns_mov_b64 exec, -1")
    stamp(20)
    a.label("L_noflag")
    a("s_waitcnt lgkmcnt(0)\ns_branch L_barC")
    a.label("L_wo_ld")
    for m in range(6, 10):
        wo_late(m)
        for x in rd_wo(m - 6):
            a(x)
    for m in range(4, 6):
        for x in rd_wo(m):
            a(x)
    a("s_waitcnt lgkmcnt(0)\ns_barrier")
    wo_late(10)
    wo_late(11)
    a("s_waitcnt vmcnt(16)\ns_barrier")
    for m in range(12, 16):
        wo_late(m)
        for x in rd_wo(m - 6):
            a(x)
    a("s_waitcnt vmcnt(0) lgkmcnt(0)")
    a.label("L_barC")
    a("s_barrier")
    stamp(21)
    for m in range(10, 16):
        for x in rd_wo(m):
            a(x)
    for ii in range(4):
        a(f"s_lshl_b32 s{sT0}, s{sNQ}, 2\ns_add_u32 s{sT0}, s{sT0}, s{sRb}\ns_add_u32 s{sT0}, s{sT0}, {ii}\ns_and_b32 s{sT0}, s{sT0}, 15")
        a(f"s_lshl_b32 s{sT1}, s{sKH}, 4\ns_add_u32 s{sT0}, s{sT0}, s{sT1}\ns_lshl_b32 s{sOo+ii}, s{sT0}, 10")
    a(f"s_cmp_lg_u32 s{sWave}, 5\ns_cbranch_scc1 L_polled")
    a(f"v_lshlrev_b32 v20, 2, v{vLane}\ns_mov_b32 exec_hi, 0xff\ns_mov_b32 s{sT1}, 0")
    a.label("L_poll")
    a(f"buffer_load_dword v21, v20, {srd(sF)}, 0 offen sc1\ns_add_u32 s{sT1}, s{sT1}, 1\ns_waitcnt vmcnt(0)")
    a(f"v_cmp_ne_u32 vcc, 1, v21\ns_cmp_gt_u32 s{sT1}, {SPIN}\ns_cbranch_scc1 L_poll_done\ns_cbranch_vccnz L_poll")
    a.label("L_poll_done")
    a("s_mov_b32 exec_hi, -1")
    a.label("L_polled")
    a("s_waitcnt lgkmcnt(0)\ns_barrier")
    stamp(22)

    vOa, vScr, FR, AC, KEEP, TMP, vOut = 6, 7, 16, 48, 64, 72, 8

    def tile_of(p):
        if p == 0:
            a(f"s_mov_b32 s{sTile}, 4")
        else:
            a(f"s_add_u32 s{sTile}, s{sG}, {p}\ns_and_b32 s{sTile}, s{sTile}, 3")

    def o_dma(p):
        tile_of(p)
        a(f"s_lshl_b32 s{sT2}, s{sTile}, 15\ns_lshl_b32 s{sT3}, s{sWave}, 12\ns_add_u32 s{sT3}, s{sT3}, {OPOS[p]}")
        for ii in range(4):
            a(f"s_add_u32 m0, s{sT3}, {1024*ii}\ns_add_u32 s{sT0}, s{sT2}, s{sOo+ii}")
            a(f"buffer_load_dwordx4 v{vL16}, {srd(sO)}, s{sT0} offen sc1 lds")

    for p in range(4):
        o_dma(p)
    a(f"s_lshl_b32 s{sT0}, s{sKH}, 14\nv_add_u32 v9, s{sT0}, v{vL16}")
    a(f"s_lshl_b32 s{sT0}, s{sNQ}, 11\nv_add_u32 v10, s{sT0}, v{vL16}")
    a(f"v_lshlrev_b32 v20, 11, v{vL15}\nv_and_b32 v21, 1, v{vG}\nv_lshl_add_u32 v20, v21, 5, v20\nv_lshrrev_b32 v21, 1, v{vG}")
    a(f"v_lshl_add_u32 v{vOut}, v21, 4, v20")

    def tile_mm(p):
        acc = AC + 8 * (p & 1)
        for k in range(8):
            a(f"ds_read_b128 {vr(FR+4*k,4)}, v{vOa} offset:{1024*k}")
        for m in range(16):
            f = FR + 4 * (m & 7)
            a(f"s_waitcnt lgkmcnt({min(7, 15-m)})")
            for nt in range(2):
                c = "0" if m == 0 else vr(acc + 4 * nt, 4)
                a(f"v_mfma_f32_16x16x32_bf16 {vr(acc+4*nt,4)}, {ar(8*m+4*nt,4)}, {vr(f,4)}, {c}")
            if m < 8:
                a(f"ds_read_b128 {vr(f,4)}, v{vOa} offset:{1024*(m+8)}")

    a(f"s_cmp_eq_u32 s{sKH}, 1\ns_cbranch_scc1 L_p2b")
    wa = [12, 8, 8, 4, 0]
    for p in range(5):
        a(f"v_add_u32 v{vOa}, {OPOS[p]}, v9\nv_add_u32 v{vScr}, {SCR[p&1]}, v10")
        a(f"s_waitcnt vmcnt({wa[p]})\ns_barrier")
        stamp(23 + p)
        if p == 1:
            o_dma(4)
        tile_mm(p)
        acc = AC + 8 * (p & 1)
        a(f"s_nop 6\nds_write_b128 v{vScr}, {vr(acc,4)}\nds_write_b128 v{vScr}, {vr(acc+4,4)} offset:1024\ns_waitcnt lgkmcnt(0)")
    a("s_barrier")
    stamp(28)
    a("s_branch L_done")

    a.label("L_p2b")

    def combine(p):
        acc = AC + 8 * (p & 1)
        a(f"v_add_u32 v{vScr}, {SCR[p&1]}, v10")
        a(f"ds_read_b128 {vr(TMP,4)}, v{vScr}\nds_read_b128 {vr(TMP+4,4)}, v{vScr} offset:1024\ns_waitcnt lgkmcnt(0)")
        for k in range(8):
            a(f"v_add_f32 v{acc+k}, v{acc+k}, v{TMP+k}")
        return acc

    def send(acc):
        for k in range(8):
            a(f"v_min_u32 v{TMP+k}, -2, v{acc+k}")
        a(f"buffer_store_dwordx4 {vr(TMP,4)}, v{vL16}, {srd(sIB)}, s{sT0} offen sc1")
        a(f"buffer_store_dwordx4 {vr(TMP+4,4)}, v{vL16}, {srd(sIB)}, s{sT0} offen offset:1024 sc1")

    wb = [12, 8, 8, 6, 4]
    for p in range(5):
        a(f"v_add_u32 v{vOa}, {OPOS[p]}, v9")
        a(f"s_waitcnt vmcnt({wb[p]})\ns_barrier")
        stamp(23 + p)
        if p == 1:
            o_dma(4)
            acc = combine(0)
            a(f"s_cmp_eq_u32 s{sNQ}, s{sG}\ns_cbranch_scc1 L_keep")
            a(f"s_and_b32 s{sT0}, s2, 0xf9\ns_lshl_b32 s{sT1}, s{sNQ}, 1\ns_or_b32 s{sT0}, s{sT0}, s{sT1}\ns_mul_i32 s{sT0}, s{sT0}, {IB_PER}")
            a(f"s_sub_u32 s{sT1}, s{sG}, s{sNQ}\ns_sub_u32 s{sT1}, s{sT1}, 1\ns_and_b32 s{sT1}, s{sT1}, 3\ns_mul_i32 s{sT1}, s{sT1}, 10240")
            a(f"s_add_u32 s{sT0}, s{sT0}, s{sT1}\ns_add_u32 s{sT0}, s{sT0}, 8192")
            send(acc)
            a.label("L_keep")
            for k in range(8):
                a(f"v_mov_b32 v{KEEP+k}, v{acc+k}")
        elif p > 1:
            acc = combine(p - 1)
            tile_of(p - 1)
            a(f"s_and_b32 s{sT0}, s2, 0xf9\ns_lshl_b32 s{sT1}, s{sTile}, 1\ns_or_b32 s{sT0}, s{sT0}, s{sT1}\ns_mul_i32 s{sT0}, s{sT0}, {IB_PER}")
            a(f"s_lshl_b32 s{sT1}, s{sNQ}, 11\ns_add_u32 s{sT0}, s{sT0}, s{sT1}\ns_add_u32 s{sT0}, s{sT0}, {(3-(p-1))*10240}")
            send(acc)
        tile_mm(p)
    a("s_barrier\ns_nop 2")
    stamp(28)
    acc = combine(4)

    def finish(tag, acc, slot_s, tile_s):
        a(f"s_mov_b32 s{sT5}, 0")
        a.label(f"L_fin_{tag}")
        for r in range(3):
            a(f"s_add_u32 s{sT1}, {slot_s}, {10240*r}")
            a(f"buffer_load_dwordx4 {vr(TMP+8*r,4)}, v{vL16}, {srd(sIB)}, s{sT1} offen sc1")
            a(f"buffer_load_dwordx4 {vr(TMP+8*r+4,4)}, v{vL16}, {srd(sIB)}, s{sT1} offen offset:1024 sc1")
        a(f"s_add_u32 s{sT5}, s{sT5}, 1\ns_waitcnt vmcnt(0)")
        a(f"v_max3_u32 v20, v{TMP}, v{TMP+1}, v{TMP+2}")
        for k in range(3, 23, 2):
            a(f"v_max3_u32 v20, v20, v{TMP+k}, v{TMP+k+1}")
        a(f"v_max_u32 v20, v20, v{TMP+23}")
        a(f"v_cmp_eq_u32 vcc, -1, v20\ns_cmp_gt_u32 s{sT5}, {SPIN}\ns_cbranch_scc1 L_got_{tag}\ns_cbranch_vccnz L_fin_{tag}")
        a.label(f"L_got_{tag}")
        for r in range(3):
            for k in range(8):
                a(f"v_add_f32 v{acc+k}, v{acc+k}, v{TMP+8*r+k}")
        for k in range(4):
            a(f"v_cvt_pk_bf16_f32 v{TMP+k}, v{acc+2*k}, v{acc+2*k+1}")
        a(f"s_mul_i32 s{sT1}, s{sB}, 5\ns_add_u32 s{sT1}, s{sT1}, {tile_s}\ns_lshl_b32 s{sT1}, s{sT1}, 15")
        a(f"v_permlane16_swap_b32 v{TMP}, v{TMP+2}\nv_permlane16_swap_b32 v{TMP+1}, v{TMP+3}")
        a(f"s_lshl_b32 s{sT2}, s{sJ}, 8\ns_lshl_b32 s{sT3}, s{sNQ}, 6\ns_add_u32 s{sT1}, s{sT1}, s{sT2}\ns_add_u32 s{sT1}, s{sT1}, s{sT3}")
        a(f"buffer_store_dwordx4 {vr(TMP,4)}, v{vOut}, {srd(sOut)}, s{sT1} offen")

    a(f"s_cmp_lg_u32 s{sNQ}, s{sG}\ns_cbranch_scc1 L_fin_own")
    a(f"s_add_u32 s{sT6}, s{sOwnBase}, 8192")
    finish("t4", KEEP, f"s{sT6}", "4")
    a.label("L_fin_own")
    a(f"s_lshl_b32 s{sT6}, s{sNQ}, 11\ns_add_u32 s{sT6}, s{sT6}, s{sOwnBase}")
    finish("a", acc, f"s{sT6}", f"s{sG}")
    a.label("L_done")
    if ts:
        a("s_waitcnt vmcnt(0)")
        stamp(29)
        a(f"s_memrealtime s[98:99]\ns_waitcnt lgkmcnt(0)\nv_writelane_b32 v{vTS}, s98, 63")
        a(f"s_lshl_b32 s{sT0}, s2, 3\ns_add_u32 s{sT0}, s{sT0}, s{sWave}\ns_lshl_b32 s{sT0}, s{sT0}, 8\nv_lshlrev_b32 v20, 2, v{vLane}")
        a(f"buffer_store_dword v{vTS}, v20, {srd(sTS)}, s{sT0} offen")
    a.label("L_end")
    a("s_endpgm")
    a('.section .rodata,"a"\n.p2align 6')
    a(f".amdhsa_kernel {KNAME}")
    a(""".amdhsa_next_free_vgpr 256
.amdhsa_next_free_sgpr 102
.amdhsa_accum_offset 128
.amdhsa_group_segment_fixed_size 0
.amdhsa_kernarg_size 64
.amdhsa_user_sgpr_count 2
.amdhsa_user_sgpr_kernarg_segment_ptr 1
.amdhsa_system_sgpr_workgroup_id_x 1
.amdhsa_float_denorm_mode_32 3
.end_amdhsa_kernel""")
    probs = check_hazards(a.lines)
    for pr in probs:
        print("HAZARD", pr, file=sys.stderr)
    return HEADER + a.text()


if __name__ == "__main__":
    kw = {}
    out = "standalone__mha_block_cached__near_ridge.s"
    for x in sys.argv[1:]:
        k, v = x.split("=", 1)
        if k == "out":
            out = v
        else:
            kw[k] = int(v, 0) if v.lstrip("-").replace("0x", "").isdigit() else v
    open(out, "w").write(gen(**kw))
```

```python
import sys, math, struct
sys.path.insert(0, "work")
from asmlib import Asm, check_hazards

KNAME = "standalone__mha_block_cached__near_ridge_kernel"

HEADER = """; Kernarg layout for this problem (64 bytes, ptrs only, base s[0:1]):
;   offset  40: d_out     shape=(8, 80, 1024) dtype=bfloat16 (2 bytes/elem)
; One workgroup per (batch, head): Q projection, attention, then a 80x128 tile of the output
"""

SLOT, WOFF = 26624, 10240
KB, VB = 106496, 126976
QX = 86016
UNIT0 = [18, 4, 6, 8, 0, 2, 10, 12, 14, 16, 18, 4, 6, 8, 0, 2]
OPOS = [81920, 0, 32768, 114688, 81920]
SCR = [147456, 155648]
F_OFF, IB_OFF, TS_OFF = 0x500000, 0x600000, 0xE00000
IB_PER = 30720
SPIN = 1 << 16

sX, sW, sK, sV, sWo, sO, sF, sIB, sOut, sDbg, sTS = 20, 24, 28, 32, 36, 40, 44, 48, 52, 56, 60
sWave, sXc, sHH, sB, sH, sG, sJ, sRot, sI, sSlot = range(64, 74)
sT0, sT1, sT2, sT3, sT4, sT5, sT6, sT7 = range(74, 82)
sC, sRb, sKH, sNQ, sLX, sLW, sCh = range(82, 89)
sOo = 89
sTile, sOwnBase = 93, 94
sTm = 96

vLane, vL15, vG, vL16, vTS = 1, 2, 3, 4, 5


def srd(r):
    return f"s[{r}:{r+3}]"


def vr(r, n=1):
    return f"v{r}" if n == 1 else f"v[{r}:{r+n-1}]"


def ar(r, n=1):
    return f"a{r}" if n == 1 else f"a[{r}:{r+n-1}]"


def gen(px="", pw="nt", pkv="nt", pwo="nt", rot="A", kv0=2, ts=False, ws_off=0, dbg=0, pad=-1):
    a = Asm()
    cexp = struct.unpack("<I", struct.pack("<f", math.log2(math.e) / math.sqrt(128.0)))[0]

    def stamp(k):
        if pad == k:
            a("s_memrealtime s[100:101]\ns_waitcnt lgkmcnt(0)")
        if ts:
            a(f"s_memtime s[{sTm}:{sTm+1}]\ns_waitcnt lgkmcnt(0)\nv_writelane_b32 v{vTS}, s{sTm}, {k}")

    def stamp_i(base):
        if pad >= 100:
            a(f"s_cmp_lg_u32 s{sI}, {pad-100}\ns_cbranch_scc1 L_nopad\ns_memrealtime s[100:101]\ns_waitcnt lgkmcnt(0)")
            a.label("L_nopad")
        if ts:
            a(f"s_memtime s[{sTm}:{sTm+1}]\ns_add_u32 m0, s{sI}, {base}\ns_waitcnt lgkmcnt(0)\nv_writelane_b32 v{vTS}, s{sTm}, m0")

    def dump(regs, slot):
        if not dbg:
            return
        a(f"s_add_u32 s60, s18, 0x1000000\ns_addc_u32 s61, s19, 0\ns_mov_b32 s62, 0x4000000\ns_mov_b32 s63, 0x20000")
        a(f"s_lshl_b32 s{sT7}, s2, 3\ns_add_u32 s{sT7}, s{sT7}, s{sWave}\ns_lshl_b32 s{sT7}, s{sT7}, 15\ns_add_u32 s{sT7}, s{sT7}, {slot*256}")
        a(f"v_lshlrev_b32 v127, 2, v{vLane}\ns_nop 7\ns_waitcnt lgkmcnt(0)")
        for k, r in enumerate(regs):
            a(f"buffer_store_dword {r}, v127, s[60:63], s{sT7} offen\ns_add_u32 s{sT7}, s{sT7}, 256")
        a("s_waitcnt vmcnt(0)")

    def mk_srd(r, ptr, off, size):
        if off is None:
            a(f"s_mov_b32 s{r}, s{ptr}\ns_mov_b32 s{r+1}, s{ptr+1}")
        else:
            a(f"s_add_u32 s{r}, s{ptr}, {off}\ns_addc_u32 s{r+1}, s{ptr+1}, 0")
        a(f"s_mov_b32 s{r+2}, {size}\ns_mov_b32 s{r+3}, 0x20000")

    def late_srds():
        a(f"s_lshl_b32 s{sT0}, s{sB}, 5\ns_add_u32 s{sT0}, s{sT0}, s{sH}\ns_mul_i32 s{sT0}, s{sT0}, 20480")
        mk_srd(sK, 6, f"s{sT0}", 20480)
        mk_srd(sV, 8, f"s{sT0}", 20480)
        a(f"s_lshl_b32 s{sT0}, s{sG}, 21\ns_lshl_b32 s{sT1}, s{sJ}, 8\ns_add_u32 s{sT0}, s{sT0}, s{sT1}\ns_sub_u32 s{sT1}, 0x800000, s{sT0}")
        mk_srd(sWo, 12, f"s{sT0}", f"s{sT1}")
        a(f"s_lshl_b32 s{sT2}, s{sB}, 2\ns_add_u32 s{sT2}, s{sT2}, s{sG}")
        a(f"s_mul_i32 s{sT0}, s{sT2}, 163840\ns_add_u32 s{sT0}, s{sT0}, {ws_off}")
        mk_srd(sO, 18, f"s{sT0}", 163840)
        a(f"s_lshl_b32 s{sT0}, s{sT2}, 8\ns_add_u32 s{sT0}, s{sT0}, {ws_off + F_OFF}")
        mk_srd(sF, 18, f"s{sT0}", 256)
        mk_srd(sIB, 18, ws_off + IB_OFF, 256 * IB_PER)
        mk_srd(sOut, 14, None, 1310720)
        mk_srd(sDbg, 16, None, 256)
        if ts:
            mk_srd(sTS, 18, ws_off + TS_OFF, 256 * 8 * 256)
        a(f"s_mul_i32 s{sOwnBase}, s2, {IB_PER}")
        a(f"s_lshl_b32 s{sRb}, s{sB}, 1")
        a(f"s_lshr_b32 s{sKH}, s{sWave}, 2\ns_and_b32 s{sNQ}, s{sWave}, 3")
        a(f"s_mov_b32 s{sC}, {cexp:#x}")

    a(f"; @launch grid=(256,1,1) block=(512,1,1) lds=163840")
    a('.amdgcn_target "amdgcn-amd-amdhsa--gfx950"\n.text')
    a(f".globl {KNAME}\n.p2align 8\n.type {KNAME},@function")
    a.label(KNAME)
    a("s_cmp_ge_u32 s2, 256\ns_cbranch_scc1 L_end")
    a("s_load_dwordx16 s[4:19], s[0:1], 0")
    if pad >= 0:
        a("s_memrealtime s[100:101]")
    if ts:
        a(f"v_mov_b32 v{vTS}, 0\ns_memrealtime s[98:99]\ns_memtime s[{sTm}:{sTm+1}]")
    a(f"v_lshrrev_b32 v6, 6, v0\nv_and_b32 v{vLane}, 63, v0")
    a(f"v_readfirstlane_b32 s{sWave}, v6")
    a(f"v_and_b32 v{vL15}, 15, v0\nv_lshrrev_b32 v{vG}, 4, v{vLane}\nv_lshlrev_b32 v{vL16}, 4, v{vLane}")
    a(f"s_and_b32 s{sXc}, s2, 7\ns_bfe_u32 s{sHH}, s2, 0x20003\ns_lshr_b32 s{sB}, s2, 5")
    a(f"s_lshl_b32 s{sH}, s{sXc}, 2\ns_add_u32 s{sH}, s{sH}, s{sHH}")
    a(f"s_lshr_b32 s{sG}, s{sXc}, 1\ns_and_b32 s{sJ}, s{sH}, 7")
    a(f"s_cmp_lt_u32 s{sWave}, 4\ns_cbranch_scc1 L_compute")

    vX, vW, vWoD = 8, 11, 15
    a(f"s_sub_u32 s{sT7}, s{sWave}, 4")
    a(f"s_mul_i32 s{sT0}, s{sT7}, 20\nv_lshrrev_b32 v6, 3, v{vLane}\nv_add_u32 v6, s{sT0}, v6\nv_and_b32 v7, 7, v{vLane}")
    for i in range(3):
        a(f"v_add_u32 v20, {8*i}, v6\nv_bfe_u32 v21, v20, 1, 3\nv_xor_b32 v21, v21, v7\nv_lshlrev_b32 v21, 4, v21")
        a(f"v_lshl_add_u32 v21, v20, 11, v21\nv_subrev_u32 v{vX+i}, {1024*i}, v21")
    a(f"s_lshl_b32 s{sT0}, s{sT7}, 4\nv_add_u32 v6, s{sT0}, v{vG}")
    for i in range(4):
        a(f"v_add_u32 v20, {4*i}, v6\nv_add_u32 v21, {4*((i>>1)&1)}, v{vG}\nv_lshlrev_b32 v21, 1, v21\nv_xor_b32 v21, v21, v{vL15}")
        a(f"v_lshlrev_b32 v21, 4, v21\nv_lshl_add_u32 v21, v20, 13, v21\nv_subrev_u32 v{vW+i}, {1024*i}, v21")
    a(f"s_mul_i32 s{sLX}, s{sT7}, 2560\ns_lshl_b32 s{sLW}, s{sT7}, 12\ns_add_u32 s{sLW}, s{sLW}, {WOFF}")
    if rot == "A":
        a(f"s_lshl_b32 s{sCh}, s{sHH}, 1\ns_add_u32 s{sCh}, s{sCh}, s{sB}\ns_lshl_b32 s{sCh}, s{sCh}, 1\ns_and_b32 s{sCh}, s{sCh}, 15")
    elif rot == "B":
        a(f"s_add_u32 s{sCh}, s{sB}, s{sXc}\ns_lshl_b32 s{sCh}, s{sCh}, 1\ns_and_b32 s{sCh}, s{sCh}, 15")
    elif rot == "D":
        a(f"s_lshl_b32 s{sCh}, s{sB}, 1")
    else:
        a(f"s_mov_b32 s{sCh}, 0")
    a(f"s_mov_b32 s{sSlot}, {SLOT}")
    a(f"s_mul_i32 s{sT0}, s{sB}, 163840\ns_lshl_b32 s{sT1}, s{sH}, 8\ns_sub_u32 s{sT2}, 0x800000, s{sT1}")
    a("s_waitcnt lgkmcnt(0)")
    if ts:
        a(f"v_writelane_b32 v{vTS}, s{sTm}, 0\nv_writelane_b32 v{vTS}, s98, 62")
    mk_srd(sX, 4, f"s{sT0}", 163840)
    mk_srd(sW, 10, f"s{sT1}", f"s{sT2}")

    def issue_stage():
        a(f"s_add_u32 m0, s{sSlot}, s{sLX}\ns_lshl_b32 s{sT0}, s{sCh}, 7\ns_lshl_b32 s{sT1}, s{sCh}, 19")
        a(f"buffer_load_dwordx4 v{vX}, {srd(sX)}, s{sT0} offen {px} lds")
        a(f"buffer_load_dwordx4 v{vX+1}, {srd(sX)}, s{sT0} offen offset:1024 {px} lds")
        a("s_mov_b32 exec_hi, 0")
        a(f"buffer_load_dwordx4 v{vX+2}, {srd(sX)}, s{sT0} offen offset:2048 {px} lds")
        a(f"s_add_u32 m0, s{sSlot}, s{sLW}\ns_mov_b32 exec_hi, -1")
        for i in range(4):
            a(f"buffer_load_dwordx4 v{vW+i}, {srd(sW)}, s{sT1} offen offset:{1024*i} {pw} lds")
        a(f"s_add_u32 s{sCh}, s{sCh}, 1\ns_and_b32 s{sCh}, s{sCh}, 15")
        a(f"s_add_u32 s{sSlot}, s{sSlot}, {SLOT}\ns_cmp_eq_u32 s{sSlot}, {4*SLOT}\ns_cselect_b32 s{sSlot}, 0, s{sSlot}")

    for _ in range(3):
        issue_stage()
    late_srds()
    for i in range(4):
        a(f"v_add_u32 v20, {4*i}, v{vG}\nv_add_u32 v21, {4*(i&1)}, v{vG}\nv_lshlrev_b32 v21, 1, v21\nv_xor_b32 v21, v21, v{vL15}")
        a(f"v_lshlrev_b32 v21, 4, v21\nv_lshl_add_u32 v21, v20, 11, v21\nv_subrev_u32 v{vWoD+i}, {1024*i}, v21")
    a(f"s_mov_b32 s{sI}, 0\ns_waitcnt vmcnt(14)")
    a.label("L_lloop")
    a("s_barrier")
    stamp_i(1)
    issue_stage()
    a(f"s_add_u32 s{sI}, s{sI}, 1\ns_cmp_lt_u32 s{sI}, 13\ns_waitcnt vmcnt(14)\ns_cbranch_scc1 L_lloop")

    def wo_block(lds_s, m_s, kh_s):
        a(f"s_add_u32 s{sT0}, {m_s}, s{sRb}\ns_and_b32 s{sT0}, s{sT0}, 15\ns_lshl_b32 s{sT0}, s{sT0}, 16")
        a(f"s_lshl_b32 s{sT1}, {kh_s}, 20\ns_mov_b32 m0, {lds_s}\ns_add_u32 s{sT0}, s{sT0}, s{sT1}")
        for i in range(4):
            a(f"buffer_load_dwordx4 v{vWoD+i}, {srd(sWo)}, s{sT0} offen offset:{1024*i} {pwo} lds")
        a(f"s_add_u32 m0, {lds_s}, 4096\ns_add_u32 s{sT0}, s{sT0}, 32768")
        for i in range(4):
            a(f"buffer_load_dwordx4 v{vWoD+i}, {srd(sWo)}, s{sT0} offen offset:{1024*i} {pwo} lds")

    def wo_batch(bt):
        a(f"s_and_b32 s{sT2}, s{sWave}, 1\ns_bfe_u32 s{sT3}, s{sWave}, 0x10001")
        a(f"s_cmp_eq_u32 s{sT3}, 0\ns_cselect_b32 s{sT4}, {UNIT0[2*bt]}, {UNIT0[2*bt+1]}")
        a(f"s_add_u32 s{sT4}, s{sT4}, s{sT2}\ns_lshl_b32 s{sT4}, s{sT4}, 13\ns_add_u32 s{sT3}, s{sT3}, {2*bt}")
        wo_block(f"s{sT4}", f"s{sT3}", f"s{sT2}")

    a("s_barrier")
    stamp(14)
    wo_batch(0)
    a("s_waitcnt vmcnt(15)\ns_barrier")
    stamp(15)
    a("s_waitcnt vmcnt(8)\ns_barrier")
    stamp(16)
    wo_batch(1)
    a("s_barrier")
    stamp(17)
    wo_batch(2)
    a(f"s_cmp_eq_u32 s{sWave}, 4\ns_cbranch_scc1 L_attn")
    a(f"s_cmp_lg_u32 s{sWave}, 5\ns_cbranch_scc1 L_ld_wait")
    a(f"s_lshl_b32 s{sT0}, s{sB}, 4\nv_lshlrev_b32 v6, 2, v{vLane}\ns_mov_b64 exec, 15\ns_mov_b32 s{sT1}, 0")
    a.label("L_conf")
    a(f"buffer_load_dword v7, v6, {srd(sDbg)}, s{sT0} offen sc1\ns_add_u32 s{sT1}, s{sT1}, 1\ns_waitcnt vmcnt(0)")
    a(f"v_cmp_gt_u32 vcc, 8, v7\ns_cmp_gt_u32 s{sT1}, {SPIN}\ns_cbranch_scc1 L_conf_done\ns_cbranch_vccnz L_conf")
    a.label("L_conf_done")
    a("s_mov_b64 exec, -1")
    a.label("L_ld_wait")
    a("s_waitcnt vmcnt(0)\ns_branch L_barA")

    a.label("L_compute")
    vXa, vWa, cX, cW, vKd, vVd = 6, 8, 10, 12, 14, 15
    X0, W0, X1, W1, ACC = 16, 36, 44, 64, 72
    vSw = 112
    a(f"v_lshrrev_b32 v20, 1, v{vL15}\nv_xor_b32 v20, v20, v{vG}\nv_lshlrev_b32 v20, 4, v20\nv_lshl_add_u32 v{vXa}, v{vL15}, 7, v20")
    a(f"v_xor_b32 v{vXa+1}, 64, v{vXa}")
    a(f"v_bfe_u32 v20, v{vLane}, 2, 2\nv_and_b32 v21, 1, v{vG}\nv_lshl_add_u32 v21, v21, 2, v20\nv_lshlrev_b32 v{vSw}, 1, v21")
    a(f"s_lshl_b32 s{sT0}, s{sWave}, 2\nv_bfe_u32 v21, v{vLane}, 1, 1\nv_add_u32 v21, s{sT0}, v21\nv_xor_b32 v21, v21, v{vSw}")
    a(f"v_lshl_add_u32 v20, v{vG}, 3, v20\nv_lshlrev_b32 v20, 8, v20\nv_lshl_add_u32 v20, v21, 4, v20")
    a(f"v_and_b32 v21, 1, v{vLane}\nv_lshl_add_u32 v20, v21, 3, v20\nv_add_u32 v{vWa}, {WOFF}, v20\nv_xor_b32 v{vWa+1}, 32, v{vWa}")
    a(f"v_add_u32 v20, s{sT0}, v{vG}\nv_xor_b32 v21, v20, v{vL15}\nv_lshlrev_b32 v21, 4, v21\nv_lshl_add_u32 v{vKd}, v20, 8, v21")
    a(f"v_and_b32 v21, 7, v20\nv_lshlrev_b32 v21, 1, v21\nv_xor_b32 v21, v21, v{vL15}\nv_lshlrev_b32 v21, 4, v21\nv_lshl_add_u32 v{vVd}, v20, 8, v21")
    for r in range(X1, ACC + 40):
        a(f"v_mov_b32 v{r}, 0")
    a(f"s_mov_b32 s{sSlot}, {SLOT}")
    for k in range(2):
        a(f"v_add_u32 v{cX+k}, s{sSlot}, v{vXa+k}\nv_add_u32 v{cW+k}, s{sSlot}, v{vWa+k}")
    a("s_waitcnt lgkmcnt(0)")
    if ts:
        a(f"v_writelane_b32 v{vTS}, s{sTm}, 0\nv_writelane_b32 v{vTS}, s98, 62")
    late_srds()
    for r in range(16, 20):
        a(f"v_mov_b32 v{r}, -1")
    for i in range(8):
        a(f"s_add_u32 s{sT0}, s{sWave}, {4*i}\ns_min_u32 s{sT0}, s{sT0}, 29\ns_lshl_b32 s{sT0}, s{sT0}, 10\ns_add_u32 s{sT0}, s{sT0}, s{sOwnBase}")
        a(f"buffer_store_dwordx4 v[16:19], v{vL16}, {srd(sIB)}, s{sT0} offen sc1")
    a(f"s_cmp_lg_u32 s{sWave}, 0\ns_cbranch_scc1 L_noclear")
    a(f"v_lshlrev_b32 v20, 5, v{vLane}\nv_mov_b32 v21, 0\ns_lshl_b32 s{sT0}, s{sJ}, 2\ns_mov_b64 exec, 31")
    a(f"buffer_store_dword v21, v20, {srd(sF)}, s{sT0} offen sc1\ns_mov_b64 exec, -1")
    a.label("L_noclear")
    a(f"s_mov_b32 s{sI}, 0")

    def rd_set(X, W, s):
        r = []
        r.append(f"ds_read_b64_tr_b16 {vr(W,2)}, v{cW} offset:{8192*s}")
        r.append(f"ds_read_b64_tr_b16 {vr(W+2,2)}, v{cW} offset:{8192*s+1024}")
        r.append(f"ds_read_b128 {vr(X,4)}, v{cX+s}")
        r.append(f"ds_read_b64_tr_b16 {vr(W+4,2)}, v{cW+1} offset:{8192*s}")
        r.append(f"ds_read_b64_tr_b16 {vr(W+6,2)}, v{cW+1} offset:{8192*s+1024}")
        for t in range(1, 5):
            r.append(f"ds_read_b128 {vr(X+4*t,4)}, v{cX+s} offset:{2048*t}")
        return r

    def mm_set(X, W):
        return [f"v_mfma_f32_16x16x32_bf16 {vr(ACC+8*t+4*d,4)}, {vr(W+4*d,4)}, {vr(X+4*t,4)}, {vr(ACC+8*t+4*d,4)}"
                for t in range(5) for d in range(2)]

    a.label("L_cloop")
    a("s_barrier")
    r0, r1, m0_, m1_ = rd_set(X0, W0, 0), rd_set(X1, W1, 1), mm_set(X0, W0), mm_set(X1, W1)
    for k in range(10):
        if k < 9:
            a(r0[k])
        a(m1_[k])
    waits = {0: 6, 1: 5, 2: 5, 4: 6, 6: 7, 8: 8}
    for k in range(10):
        if k in waits:
            a(f"s_waitcnt lgkmcnt({waits[k]})")
        a(m0_[k])
        if k < 9:
            a(r1[k])
    a(f"s_add_u32 s{sSlot}, s{sSlot}, {SLOT}\ns_cmp_eq_u32 s{sSlot}, {4*SLOT}\ns_cselect_b32 s{sSlot}, 0, s{sSlot}")
    for k in range(2):
        a(f"v_add_u32 v{cX+k}, s{sSlot}, v{vXa+k}\nv_add_u32 v{cW+k}, s{sSlot}, v{vWa+k}")
    a(f"s_cmp_lg_u32 s{sI}, 1\ns_cbranch_scc1 L_c_nodrain\ns_waitcnt vmcnt(0)")
    a.label("L_c_nodrain")
    a(f"s_cmp_lg_u32 s{sI}, 2\ns_cbranch_scc1 L_c_noconf\ns_cmp_lg_u32 s{sWave}, 0\ns_cbranch_scc1 L_c_noconf")
    a(f"s_lshl_b32 s{sT0}, s{sB}, 2\ns_add_u32 s{sT0}, s{sT0}, s{sG}\ns_lshl_b32 s{sT0}, s{sT0}, 2")
    a(f"v_mov_b32 v113, 1\nv_mov_b32 v114, 0\ns_mov_b64 exec, 1")
    a(f"buffer_atomic_add v113, v114, {srd(sDbg)}, s{sT0} offen sc1\ns_mov_b64 exec, -1")
    a.label("L_c_noconf")
    a(f"s_sub_u32 s{sT0}, s{sI}, {kv0}\ns_cmp_ge_u32 s{sT0}, 5\ns_cbranch_scc1 L_c_nok")
    a(f"s_lshl_b32 s{sT0}, s{sT0}, 12\ns_lshl_b32 s{sT1}, s{sWave}, 10\ns_add_u32 s{sT1}, s{sT1}, s{sT0}\ns_add_u32 m0, s{sT1}, {KB}\ns_nop 0")
    a(f"buffer_load_dwordx4 v{vKd}, {srd(sK)}, s{sT0} offen {pkv} lds")
    a.label("L_c_nok")
    a(f"s_sub_u32 s{sT0}, s{sI}, {kv0+5}\ns_cmp_ge_u32 s{sT0}, 5\ns_cbranch_scc1 L_c_nov")
    a(f"s_lshl_b32 s{sT0}, s{sT0}, 12\ns_lshl_b32 s{sT1}, s{sWave}, 10\ns_add_u32 s{sT1}, s{sT1}, s{sT0}\ns_add_u32 m0, s{sT1}, {VB}\ns_nop 0")
    a(f"buffer_load_dwordx4 v{vVd}, {srd(sV)}, s{sT0} offen {pkv} lds")
    a.label("L_c_nov")
    a(f"s_add_u32 s{sI}, s{sI}, 1\ns_cmp_lt_u32 s{sI}, 16\ns_waitcnt lgkmcnt(0)\ns_cbranch_scc1 L_cloop")
    for m in m1_:
        a(m)
    stamp(1)
    a(f"s_lshl_b32 s{sT0}, s{sWave}, 10\ns_add_u32 s{sT0}, s{sT0}, {QX}\nv_add_u32 v6, s{sT0}, v{vL16}")
    for t in range(5):
        if t == 4:
            a("s_nop 3")
        for k in range(4):
            a(f"v_cvt_pk_bf16_f32 v{16+4*t+k}, v{ACC+8*t+2*k}, v{ACC+8*t+2*k+1}")
        a(f"ds_write_b128 v6, {vr(16+4*t,4)} offset:{4096*t}")
    a("s_waitcnt vmcnt(0) lgkmcnt(0)\ns_barrier")
    stamp(17)

    a.label("L_attn")
    vKa, vVa, Q, S, P, ONE, OA, SUM = 6, 100, 16, 32, 52, 62, 66, 98
    SUM = 108
    a(f"s_lshl_b32 s{sT0}, s{sWave}, 12\ns_add_u32 s{sT0}, s{sT0}, {QX}\nv_add_u32 v14, s{sT0}, v{vL16}")
    for s in range(4):
        a(f"ds_read_b128 {vr(Q+4*s,4)}, v14 offset:{1024*s}")
    a(f"v_lshrrev_b32 v14, 1, v{vG}\nv_xor_b32 v14, v14, v{vL15}\nv_lshlrev_b32 v14, 4, v14\nv_lshl_add_u32 v14, v{vL15}, 8, v14")
    a(f"v_and_b32 v15, 1, v{vG}\nv_lshl_add_u32 v14, v15, 3, v14\nv_add_u32 v{vKa}, {KB}, v14")
    for k in range(1, 8):
        a(f"v_xor_b32 v{vKa+k}, {32*k}, v{vKa}")

    def rdK(u):
        for s in range(4):
            for i2 in range(2):
                a(f"ds_read_b64 {ar(16*u+4*s+2*i2,2)}, v{vKa+2*s+i2} offset:{4096*u}")

    def vreg(dt):
        return 80 + 10 * dt if dt < 4 else 10 * (dt - 4)

    def rdV(dt):
        return [f"ds_read_b64_tr_b16 {ar(vreg(dt)+2*kb,2)}, v{vVa+dt} offset:{4096*kb}" for kb in range(5)]

    def mmS(u):
        for s in range(4):
            c = "0" if s == 0 else vr(S + 4 * u, 4)
            a(f"v_mfma_f32_16x16x32_bf16 {vr(S+4*u,4)}, {ar(16*u+4*s,4)}, {vr(Q+4*s,4)}, {c}")

    rdK(0)
    a(f"v_bfe_u32 v14, v{vLane}, 2, 2\nv_and_b32 v15, 1, v{vG}\nv_lshl_add_u32 v15, v15, 2, v14\nv_lshlrev_b32 v{vSw}, 1, v15")
    a(f"v_bfe_u32 v15, v{vLane}, 1, 1\nv_xor_b32 v15, v15, v{vSw}\nv_lshl_add_u32 v14, v{vG}, 2, v14\nv_lshlrev_b32 v14, 8, v14")
    a(f"v_lshl_add_u32 v14, v15, 4, v14\nv_and_b32 v15, 1, v{vLane}\nv_lshl_add_u32 v14, v15, 3, v14\nv_add_u32 v{vVa}, {VB}, v14")
    for k in range(1, 8):
        a(f"v_xor_b32 v{vVa+k}, {32*k}, v{vVa}")
    for k in range(4):
        a(f"v_mov_b32 v{ONE+k}, 0x3f803f80")
    a("s_waitcnt lgkmcnt(4)")
    rdK(1)
    a("s_waitcnt lgkmcnt(8)")
    mmS(0)
    for u in range(1, 4):
        a("s_waitcnt lgkmcnt(4)")
        rdK(u + 1)
        a("s_waitcnt lgkmcnt(8)")
        mmS(u)
    a("s_waitcnt lgkmcnt(4)")
    vq = [x for dt in range(8) for x in rdV(dt)]
    for x in vq[:8]:
        a(x)
    a("s_waitcnt lgkmcnt(8)")
    mmS(4)
    dump([f"v{Q+k}" for k in range(16)] + [f"v{S+k}" for k in range(20)], 0)
    vq = vq[8:]
    seq = []
    seq.append(f"v_max3_f32 v14, v{S}, v{S+1}, v{S+2}")
    seq.append(f"v_max3_f32 v15, v{S+3}, v{S+4}, v{S+5}")
    for k in range(6, 16, 4):
        seq.append(f"v_max3_f32 v14, v14, v{S+k}, v{S+k+1}")
        if k + 3 < 16:
            seq.append(f"v_max3_f32 v15, v15, v{S+k+2}, v{S+k+3}")
    seq.append("s_nop 0")
    seq.append(f"v_max3_f32 v15, v15, v{S+16}, v{S+17}")
    seq.append(f"v_max3_f32 v14, v14, v{S+18}, v{S+19}")
    seq.append("v_max_f32 v14, v14, v15")
    seq.append("v_mov_b32 v15, v14\ns_nop 1\nv_permlane32_swap_b32 v14, v15")
    seq.append("v_max_f32 v14, v14, v15")
    seq.append("v_mov_b32 v15, v14\ns_nop 1\nv_permlane16_swap_b32 v14, v15")
    seq.append("v_max_f32 v14, v14, v15")
    seq.append(f"v_mul_f32 v14, s{sC}, v14")
    for k in range(20):
        seq.append(f"v_fma_f32 v{S+k}, v{S+k}, s{sC}, -v14")
    for k in range(20):
        seq.append(f"v_exp_f32 v{S+k}, v{S+k}")
    seq.append("s_nop 0")
    for k in [8, 9, 0, 1, 2, 3, 4, 5, 6, 7]:
        seq.append(f"v_cvt_pk_bf16_f32 v{P+k}, v{S+2*k}, v{S+2*k+1}")
    for k, x in enumerate(seq):
        a(x)
        if vq and k >= 1 and k % 2 == 1:
            a(vq.pop(0))
    for x in vq:
        a(x)
    a("s_waitcnt lgkmcnt(0)")
    dump([f"v{S+k}" for k in range(20)] + [f"v{P+k}" for k in range(10)] + [f"a{vreg(0)+k}" for k in range(10)], 36)
    a(f"v_mfma_f32_16x16x16_bf16 {vr(SUM,4)}, {vr(ONE,2)}, {vr(P+8,2)}, 0")
    for dt in range(8):
        a(f"v_mfma_f32_16x16x16_bf16 {vr(OA+4*dt,4)}, {ar(vreg(dt)+8,2)}, {vr(P+8,2)}, 0")
    a(f"v_mfma_f32_16x16x32_bf16 {vr(SUM,4)}, {vr(ONE,4)}, {vr(P,4)}, {vr(SUM,4)}")
    a(f"v_mfma_f32_16x16x32_bf16 {vr(SUM,4)}, {vr(ONE,4)}, {vr(P+4,4)}, {vr(SUM,4)}")
    for dt in range(8):
        o = vr(OA + 4 * dt, 4)
        a(f"v_mfma_f32_16x16x32_bf16 {o}, {ar(vreg(dt),4)}, {vr(P,4)}, {o}")
        a(f"v_mfma_f32_16x16x32_bf16 {o}, {ar(vreg(dt)+4,4)}, {vr(P+4,4)}, {o}")
        if dt == 3:
            a(f"v_rcp_f32 v14, v{SUM}")
        if dt >= 4:
            d = dt - 4
            for r in range(4):
                a(f"v_mul_f32 v{OA+4*d+r}, v14, v{OA+4*d+r}")
    dump([f"v{SUM+k}" for k in range(4)] + ["v14"] + [f"v{OA+k}" for k in range(32)], 76)
    a(f"s_lshl_b32 s{sT0}, s{sWave}, 15\ns_lshl_b32 s{sT1}, s{sJ}, 12\ns_add_u32 s{sT0}, s{sT0}, s{sT1}")
    for v in range(4):
        for d in (2 * v, 2 * v + 1):
            if d >= 4:
                for r in range(4):
                    a(f"v_mul_f32 v{OA+4*d+r}, v14, v{OA+4*d+r}")
        for k in range(4):
            a(f"v_cvt_pk_bf16_f32 v{Q+4*v+k}, v{OA+8*v+2*k}, v{OA+8*v+2*k+1}")
        a(f"buffer_store_dwordx4 {vr(Q+4*v,4)}, v{vL16}, {srd(sO)}, s{sT0} offen offset:{1024*v} sc1")
    a("s_waitcnt vmcnt(4)")

    a.label("L_barA")
    vWoA = 22
    a(f"v_bfe_u32 v20, v{vLane}, 2, 2\nv_and_b32 v21, 1, v{vG}\nv_lshl_add_u32 v21, v21, 2, v20\nv_lshlrev_b32 v28, 1, v21")
    a(f"s_lshl_b32 s{sT0}, s{sNQ}, 2\nv_bfe_u32 v21, v{vLane}, 1, 1\nv_add_u32 v21, s{sT0}, v21\nv_xor_b32 v21, v21, v28")
    a(f"v_lshl_add_u32 v20, v{vG}, 2, v20\nv_lshlrev_b32 v20, 8, v20\nv_lshl_add_u32 v20, v21, 4, v20")
    a(f"v_and_b32 v21, 1, v{vLane}\nv_lshl_add_u32 v20, v21, 3, v20\ns_lshl_b32 s{sT0}, s{sKH}, 13\nv_add_u32 v{vWoA}, s{sT0}, v20")
    a(f"v_xor_b32 v{vWoA+1}, 32, v{vWoA}")
    for k in range(2):
        a(f"v_add_u32 v{vWoA+2+k}, 0x10000, v{vWoA+k}\nv_add_u32 v{vWoA+4+k}, 0x20000, v{vWoA+k}")
    a("s_barrier")
    stamp(18)

    def rd_wo(m):
        base = UNIT0[m] * 8192
        out = []
        for nt in range(2):
            for u in range(2):
                out.append(f"ds_read_b64_tr_b16 {ar(8*m+4*nt+2*u,2)}, v{vWoA+2*(base>>16)+nt} offset:{(base & 0xffff)+4096*u}")
        return out

    def wo_late(m):
        a(f"s_and_b32 s{sT2}, s{sWave}, 1\ns_add_u32 s{sT4}, s{sT2}, {UNIT0[m]}\ns_lshl_b32 s{sT4}, s{sT4}, 13")
        wo_block(f"s{sT4}", str(m), f"s{sT2}")

    a(f"s_cmp_ge_u32 s{sWave}, 6\ns_cbranch_scc1 L_wo_ld")
    for m in range(6):
        for x in rd_wo(m):
            a(x)
    a("s_waitcnt lgkmcnt(0)\ns_barrier\ns_barrier")
    stamp(19)
    for m in range(6, 10):
        for x in rd_wo(m):
            a(x)
    a(f"s_cmp_eq_u32 s{sWave}, 5\ns_cbranch_scc1 L_noflag")
    a(f"s_lshl_b32 s{sT0}, s{sWave}, 5\ns_lshl_b32 s{sT1}, s{sJ}, 2\ns_add_u32 s{sT0}, s{sT0}, s{sT1}")
    a(f"v_mov_b32 v20, 1\nv_mov_b32 v21, 0\ns_mov_b64 exec, 1\ns_waitcnt vmcnt(0)")
    a(f"buffer_store_dword v20, v21, {srd(sF)}, s{sT0} offen sc1\ns_mov_b64 exec, -1")
    stamp(20)
    a.label("L_noflag")
    a("s_waitcnt lgkmcnt(0)\ns_branch L_barC")
    a.label("L_wo_ld")
    for m in range(6, 10):
        wo_late(m)
        for x in rd_wo(m - 6):
            a(x)
    for m in range(4, 6):
        for x in rd_wo(m):
            a(x)
    a("s_waitcnt lgkmcnt(0)\ns_barrier")
    wo_late(10)
    wo_late(11)
    a("s_waitcnt vmcnt(16)\ns_barrier")
    for m in range(12, 16):
        wo_late(m)
        for x in rd_wo(m - 6):
            a(x)
    a("s_waitcnt vmcnt(0) lgkmcnt(0)")
    a.label("L_barC")
    a("s_barrier")
    stamp(21)
    for m in range(10, 16):
        for x in rd_wo(m):
            a(x)
    for ii in range(4):
        a(f"s_lshl_b32 s{sT0}, s{sNQ}, 2\ns_add_u32 s{sT0}, s{sT0}, s{sRb}\ns_add_u32 s{sT0}, s{sT0}, {ii}\ns_and_b32 s{sT0}, s{sT0}, 15")
        a(f"s_lshl_b32 s{sT1}, s{sKH}, 4\ns_add_u32 s{sT0}, s{sT0}, s{sT1}\ns_lshl_b32 s{sOo+ii}, s{sT0}, 10")
    a(f"s_cmp_lg_u32 s{sWave}, 5\ns_cbranch_scc1 L_polled")
    a(f"v_lshlrev_b32 v20, 2, v{vLane}\ns_mov_b32 exec_hi, 0xff\ns_mov_b32 s{sT1}, 0")
    a.label("L_poll")
    a(f"buffer_load_dword v21, v20, {srd(sF)}, 0 offen sc1\ns_add_u32 s{sT1}, s{sT1}, 1\ns_waitcnt vmcnt(0)")
    a(f"v_cmp_ne_u32 vcc, 1, v21\ns_cmp_gt_u32 s{sT1}, {SPIN}\ns_cbranch_scc1 L_poll_done\ns_cbranch_vccnz L_poll")
    a.label("L_poll_done")
    a("s_mov_b32 exec_hi, -1")
    a.label("L_polled")
    a("s_waitcnt lgkmcnt(0)\ns_barrier")
    stamp(22)

    vOa, vScr, FR, AC, KEEP, TMP, vOut = 6, 7, 16, 48, 64, 72, 8

    def tile_of(p):
        if p == 0:
            a(f"s_mov_b32 s{sTile}, 4")
        else:
            a(f"s_add_u32 s{sTile}, s{sG}, {p}\ns_and_b32 s{sTile}, s{sTile}, 3")

    def o_dma(p):
        tile_of(p)
        a(f"s_lshl_b32 s{sT2}, s{sTile}, 15\ns_lshl_b32 s{sT3}, s{sWave}, 12\ns_add_u32 s{sT3}, s{sT3}, {OPOS[p]}")
        for ii in range(4):
            a(f"s_add_u32 m0, s{sT3}, {1024*ii}\ns_add_u32 s{sT0}, s{sT2}, s{sOo+ii}")
            a(f"buffer_load_dwordx4 v{vL16}, {srd(sO)}, s{sT0} offen sc1 lds")

    for p in range(4):
        o_dma(p)
    a(f"s_lshl_b32 s{sT0}, s{sKH}, 14\nv_add_u32 v9, s{sT0}, v{vL16}")
    a(f"s_lshl_b32 s{sT0}, s{sNQ}, 11\nv_add_u32 v10, s{sT0}, v{vL16}")
    a(f"v_lshlrev_b32 v20, 11, v{vL15}\nv_and_b32 v21, 1, v{vG}\nv_lshl_add_u32 v20, v21, 5, v20\nv_lshrrev_b32 v21, 1, v{vG}")
    a(f"v_lshl_add_u32 v{vOut}, v21, 4, v20")

    def tile_mm(p):
        acc = AC + 8 * (p & 1)
        for k in range(8):
            a(f"ds_read_b128 {vr(FR+4*k,4)}, v{vOa} offset:{1024*k}")
        for m in range(16):
            f = FR + 4 * (m & 7)
            a(f"s_waitcnt lgkmcnt({min(7, 15-m)})")
            for nt in range(2):
                c = "0" if m == 0 else vr(acc + 4 * nt, 4)
                a(f"v_mfma_f32_16x16x32_bf16 {vr(acc+4*nt,4)}, {ar(8*m+4*nt,4)}, {vr(f,4)}, {c}")
            if m < 8:
                a(f"ds_read_b128 {vr(f,4)}, v{vOa} offset:{1024*(m+8)}")

    a(f"s_cmp_eq_u32 s{sKH}, 1\ns_cbranch_scc1 L_p2b")
    wa = [12, 8, 8, 4, 0]
    for p in range(5):
        a(f"v_add_u32 v{vOa}, {OPOS[p]}, v9\nv_add_u32 v{vScr}, {SCR[p&1]}, v10")
        a(f"s_waitcnt vmcnt({wa[p]})\ns_barrier")
        stamp(23 + p)
        if p == 1:
            o_dma(4)
        tile_mm(p)
        acc = AC + 8 * (p & 1)
        a(f"s_nop 6\nds_write_b128 v{vScr}, {vr(acc,4)}\nds_write_b128 v{vScr}, {vr(acc+4,4)} offset:1024\ns_waitcnt lgkmcnt(0)")
    a("s_barrier")
    stamp(28)
    a("s_branch L_done")

    a.label("L_p2b")

    def combine(p):
        acc = AC + 8 * (p & 1)
        a(f"v_add_u32 v{vScr}, {SCR[p&1]}, v10")
        a(f"ds_read_b128 {vr(TMP,4)}, v{vScr}\nds_read_b128 {vr(TMP+4,4)}, v{vScr} offset:1024\ns_waitcnt lgkmcnt(0)")
        for k in range(8):
            a(f"v_add_f32 v{acc+k}, v{acc+k}, v{TMP+k}")
        return acc

    def send(acc):
        for k in range(8):
            a(f"v_min_u32 v{TMP+k}, -2, v{acc+k}")
        a(f"buffer_store_dwordx4 {vr(TMP,4)}, v{vL16}, {srd(sIB)}, s{sT0} offen sc1")
        a(f"buffer_store_dwordx4 {vr(TMP+4,4)}, v{vL16}, {srd(sIB)}, s{sT0} offen offset:1024 sc1")

    wb = [12, 8, 8, 6, 4]
    for p in range(5):
        a(f"v_add_u32 v{vOa}, {OPOS[p]}, v9")
        a(f"s_waitcnt vmcnt({wb[p]})\ns_barrier")
        stamp(23 + p)
        if p == 1:
            o_dma(4)
            acc = combine(0)
            a(f"s_cmp_eq_u32 s{sNQ}, s{sG}\ns_cbranch_scc1 L_keep")
            a(f"s_and_b32 s{sT0}, s2, 0xf9\ns_lshl_b32 s{sT1}, s{sNQ}, 1\ns_or_b32 s{sT0}, s{sT0}, s{sT1}\ns_mul_i32 s{sT0}, s{sT0}, {IB_PER}")
            a(f"s_sub_u32 s{sT1}, s{sG}, s{sNQ}\ns_sub_u32 s{sT1}, s{sT1}, 1\ns_and_b32 s{sT1}, s{sT1}, 3\ns_mul_i32 s{sT1}, s{sT1}, 10240")
            a(f"s_add_u32 s{sT0}, s{sT0}, s{sT1}\ns_add_u32 s{sT0}, s{sT0}, 8192")
            send(acc)
            a.label("L_keep")
            for k in range(8):
                a(f"v_mov_b32 v{KEEP+k}, v{acc+k}")
        elif p > 1:
            acc = combine(p - 1)
            tile_of(p - 1)
            a(f"s_and_b32 s{sT0}, s2, 0xf9\ns_lshl_b32 s{sT1}, s{sTile}, 1\ns_or_b32 s{sT0}, s{sT0}, s{sT1}\ns_mul_i32 s{sT0}, s{sT0}, {IB_PER}")
            a(f"s_lshl_b32 s{sT1}, s{sNQ}, 11\ns_add_u32 s{sT0}, s{sT0}, s{sT1}\ns_add_u32 s{sT0}, s{sT0}, {(3-(p-1))*10240}")
            send(acc)
        tile_mm(p)
    a("s_barrier\ns_nop 2")
    stamp(28)
    acc = combine(4)

    def finish(tag, acc, slot_s, tile_s):
        a(f"s_mov_b32 s{sT5}, 0")
        a.label(f"L_fin_{tag}")
        for r in range(3):
            a(f"s_add_u32 s{sT1}, {slot_s}, {10240*r}")
            a(f"buffer_load_dwordx4 {vr(TMP+8*r,4)}, v{vL16}, {srd(sIB)}, s{sT1} offen sc1")
            a(f"buffer_load_dwordx4 {vr(TMP+8*r+4,4)}, v{vL16}, {srd(sIB)}, s{sT1} offen offset:1024 sc1")
        a(f"s_add_u32 s{sT5}, s{sT5}, 1\ns_waitcnt vmcnt(0)")
        a(f"v_max3_u32 v20, v{TMP}, v{TMP+1}, v{TMP+2}")
        for k in range(3, 23, 2):
            a(f"v_max3_u32 v20, v20, v{TMP+k}, v{TMP+k+1}")
        a(f"v_max_u32 v20, v20, v{TMP+23}")
        a(f"v_cmp_eq_u32 vcc, -1, v20\ns_cmp_gt_u32 s{sT5}, {SPIN}\ns_cbranch_scc1 L_got_{tag}\ns_cbranch_vccnz L_fin_{tag}")
        a.label(f"L_got_{tag}")
        for r in range(3):
            for k in range(8):
                a(f"v_add_f32 v{acc+k}, v{acc+k}, v{TMP+8*r+k}")
        for k in range(4):
            a(f"v_cvt_pk_bf16_f32 v{TMP+k}, v{acc+2*k}, v{acc+2*k+1}")
        a(f"s_mul_i32 s{sT1}, s{sB}, 5\ns_add_u32 s{sT1}, s{sT1}, {tile_s}\ns_lshl_b32 s{sT1}, s{sT1}, 15")
        a(f"v_permlane16_swap_b32 v{TMP}, v{TMP+2}\nv_permlane16_swap_b32 v{TMP+1}, v{TMP+3}")
        a(f"s_lshl_b32 s{sT2}, s{sJ}, 8\ns_lshl_b32 s{sT3}, s{sNQ}, 6\ns_add_u32 s{sT1}, s{sT1}, s{sT2}\ns_add_u32 s{sT1}, s{sT1}, s{sT3}")
        a(f"buffer_store_dwordx4 {vr(TMP,4)}, v{vOut}, {srd(sOut)}, s{sT1} offen")

    a(f"s_cmp_lg_u32 s{sNQ}, s{sG}\ns_cbranch_scc1 L_fin_own")
    a(f"s_add_u32 s{sT6}, s{sOwnBase}, 8192")
    finish("t4", KEEP, f"s{sT6}", "4")
    a.label("L_fin_own")
    a(f"s_lshl_b32 s{sT6}, s{sNQ}, 11\ns_add_u32 s{sT6}, s{sT6}, s{sOwnBase}")
    finish("a", acc, f"s{sT6}", f"s{sG}")
    a.label("L_done")
    if pad >= 0:
        a("s_waitcnt vmcnt(0)")
        a.label("L_pad")
        a("s_memrealtime s[98:99]\ns_waitcnt lgkmcnt(0)\ns_sub_u32 s98, s98, s100\ns_cmp_lt_u32 s98, 6000\ns_cbranch_scc1 L_pad")
    if ts:
        a("s_waitcnt vmcnt(0)")
        stamp(29)
        a(f"s_memrealtime s[98:99]\ns_waitcnt lgkmcnt(0)\nv_writelane_b32 v{vTS}, s98, 63")
        a(f"s_lshl_b32 s{sT0}, s2, 3\ns_add_u32 s{sT0}, s{sT0}, s{sWave}\ns_lshl_b32 s{sT0}, s{sT0}, 8\nv_lshlrev_b32 v20, 2, v{vLane}")
        a(f"buffer_store_dword v{vTS}, v20, {srd(sTS)}, s{sT0} offen")
    a.label("L_end")
    a("s_endpgm")
    a('.section .rodata,"a"\n.p2align 6')
    a(f".amdhsa_kernel {KNAME}")
    a(""".amdhsa_next_free_vgpr 256
.amdhsa_next_free_sgpr 102
.amdhsa_accum_offset 128
.amdhsa_group_segment_fixed_size 0
.amdhsa_kernarg_size 64
.amdhsa_user_sgpr_count 2
.amdhsa_user_sgpr_kernarg_segment_ptr 1
.amdhsa_system_sgpr_workgroup_id_x 1
.amdhsa_float_denorm_mode_32 3
.end_amdhsa_kernel""")
    probs = check_hazards(a.lines)
    for pr in probs:
        print("HAZARD", pr, file=sys.stderr)
    return HEADER + a.text()


if __name__ == "__main__":
    kw = {}
    out = "standalone__mha_block_cached__near_ridge.s"
    for x in sys.argv[1:]:
        k, v = x.split("=", 1)
        if k == "out":
            out = v
        else:
            kw[k] = int(v, 0) if v.lstrip("-").replace("0x", "").isdigit() else v
    open(out, "w").write(gen(**kw))
```

```python
import sys, math, struct
sys.path.insert(0, "work")
from asmlib import Asm, check_hazards

KNAME = "standalone__mha_block_cached__near_ridge_kernel"

HEADER = """; Kernarg layout for this problem (64 bytes, ptrs only, base s[0:1]):
;   offset  40: d_out     shape=(8, 80, 1024) dtype=bfloat16 (2 bytes/elem)
; One workgroup per (batch, head): Q projection, attention, then a 80x128 tile of the output
"""

SLOT, WOFF = 26624, 10240
KB, VB = 106496, 126976
QX = 86016
EPL = 81920
UNIT0 = [18, 4, 6, 8, 0, 2, 10, 12, 14, 16, 18, 4, 6, 8, 0, 2]
OPOS = [81920, 114688, 0, 32768, 81920]
SCR = [147456, 155648]
F_OFF, E_OFF, IB_OFF, TS_OFF = 0x500000, 0x510000, 0x600000, 0xE00000
IB_PER = 30720
SPIN = 1 << 16

sX, sW, sK, sV, sWo, sO, sF, sIB, sOut, sDbg, sTS = 20, 24, 28, 32, 36, 40, 44, 48, 52, 56, 60
sWave, sXc, sHH, sB, sH, sG, sJ, sRot, sI, sSlot = range(64, 74)
sT0, sT1, sT2, sT3, sT4, sT5, sT6, sT7 = range(74, 82)
sC, sRb, sKH, sNQ, sLX, sLW, sCh = range(82, 89)
sOo = 89
sTile, sOwnBase, sEp = 93, 94, 95
sItK, sItV, sOwn, sMask = 3, 71, 56, 57
sTm = 96

vLane, vL15, vG, vL16, vTS = 1, 2, 3, 4, 5


def srd(r):
    return f"s[{r}:{r+3}]"


def vr(r, n=1):
    return f"v{r}" if n == 1 else f"v[{r}:{r+n-1}]"


def ar(r, n=1):
    return f"a{r}" if n == 1 else f"a[{r}:{r+n-1}]"


def gen(px="", pw="", pkv="nt", pwo="", rot="B", kvk=4, kvv=6, kvs=0, prA=0, prB=0, prT=0, mp="10,6,3,3,3", depth=6, ts=False, ws_off=0, dbg=0, pad=-1):
    a = Asm()
    cexp = struct.unpack("<I", struct.pack("<f", math.log2(math.e) / math.sqrt(128.0)))[0]

    def stamp(k):
        if pad == k:
            a("s_memrealtime s[100:101]\ns_waitcnt lgkmcnt(0)")
        if ts:
            a(f"s_memtime s[{sTm}:{sTm+1}]\ns_waitcnt lgkmcnt(0)\nv_writelane_b32 v{vTS}, s{sTm}, {k}")

    def stamp_i(base):
        if pad >= 100:
            a(f"s_cmp_lg_u32 s{sI}, {pad-100}\ns_cbranch_scc1 L_nopad\ns_memrealtime s[100:101]\ns_waitcnt lgkmcnt(0)")
            a.label("L_nopad")
        if ts:
            a(f"s_memtime s[{sTm}:{sTm+1}]\ns_add_u32 m0, s{sI}, {base}\ns_waitcnt lgkmcnt(0)\nv_writelane_b32 v{vTS}, s{sTm}, m0")

    def dump(regs, slot):
        if not dbg:
            return
        a(f"s_add_u32 s60, s18, 0x1000000\ns_addc_u32 s61, s19, 0\ns_mov_b32 s62, 0x4000000\ns_mov_b32 s63, 0x20000")
        a(f"s_lshl_b32 s{sT7}, s2, 3\ns_add_u32 s{sT7}, s{sT7}, s{sWave}\ns_lshl_b32 s{sT7}, s{sT7}, 15\ns_add_u32 s{sT7}, s{sT7}, {slot*256}")
        a(f"v_lshlrev_b32 v127, 2, v{vLane}\ns_nop 7\ns_waitcnt lgkmcnt(0)")
        for k, r in enumerate(regs):
            a(f"buffer_store_dword {r}, v127, s[60:63], s{sT7} offen\ns_add_u32 s{sT7}, s{sT7}, 256")
        a("s_waitcnt vmcnt(0)")

    def mk_srd(r, ptr, off, size):
        if off is None:
            a(f"s_mov_b32 s{r}, s{ptr}\ns_mov_b32 s{r+1}, s{ptr+1}")
        else:
            a(f"s_add_u32 s{r}, s{ptr}, {off}\ns_addc_u32 s{r+1}, s{ptr+1}, 0")
        a(f"s_mov_b32 s{r+2}, {size}\ns_mov_b32 s{r+3}, 0x20000")

    def late_srds():
        a(f"s_lshl_b32 s{sT0}, s{sB}, 5\ns_add_u32 s{sT0}, s{sT0}, s{sH}\ns_mul_i32 s{sT0}, s{sT0}, 20480")
        mk_srd(sK, 6, f"s{sT0}", 20480)
        mk_srd(sV, 8, f"s{sT0}", 20480)
        a(f"s_lshl_b32 s{sT0}, s{sG}, 21\ns_lshl_b32 s{sT1}, s{sJ}, 8\ns_add_u32 s{sT0}, s{sT0}, s{sT1}\ns_sub_u32 s{sT1}, 0x800000, s{sT0}")
        mk_srd(sWo, 12, f"s{sT0}", f"s{sT1}")
        a(f"s_lshl_b32 s{sT2}, s{sB}, 2\ns_add_u32 s{sT2}, s{sT2}, s{sG}")
        a(f"s_mul_i32 s{sT0}, s{sT2}, 163840\ns_add_u32 s{sT0}, s{sT0}, {ws_off}")
        mk_srd(sO, 18, f"s{sT0}", 163840)
        a(f"s_lshl_b32 s{sT0}, s{sT2}, 8\ns_add_u32 s{sT0}, s{sT0}, {ws_off + F_OFF}")
        mk_srd(sF, 18, f"s{sT0}", 256)
        mk_srd(sIB, 18, ws_off + IB_OFF, 256 * IB_PER)
        mk_srd(sOut, 14, None, 1310720)
        a(f"s_add_u32 s{sOwn}, s{sG}, s{sHH}\ns_and_b32 s{sOwn}, s{sOwn}, 3\ns_movk_i32 s{sMask}, 0xff")
        if ts:
            mk_srd(sTS, 18, ws_off + TS_OFF, 256 * 8 * 256)
        a(f"s_mul_i32 s{sOwnBase}, s2, {IB_PER}")
        a(f"s_lshl_b32 s{sRb}, s{sB}, 1")
        a(f"s_lshr_b32 s{sKH}, s{sWave}, 2\ns_and_b32 s{sNQ}, s{sWave}, 3")
        a(f"s_mov_b32 s{sC}, {cexp:#x}")

    vKa, vVa, vQa, ONE, vEp = 113, 113, 121, 122, 126

    def k_addr():
        a(f"v_lshrrev_b32 v20, 1, v{vG}\nv_xor_b32 v20, v20, v{vL15}\nv_lshlrev_b32 v20, 4, v20\nv_lshl_add_u32 v20, v{vL15}, 8, v20")
        a(f"v_and_b32 v21, 1, v{vG}\nv_lshl_add_u32 v20, v21, 3, v20\nv_add_u32 v{vKa}, {KB}, v20")
        for k in range(1, 8):
            a(f"v_xor_b32 v{vKa+k}, {32*k}, v{vKa}")
        a(f"s_lshl_b32 s{sT0}, s{sWave}, 12\ns_add_u32 s{sT0}, s{sT0}, {QX}\nv_add_u32 v{vQa}, s{sT0}, v{vL16}")
        for k in range(4):
            a(f"v_mov_b32 v{ONE+k}, 0x3f803f80")

    def v_addr():
        t0, t1, t2 = vVa + 1, vVa + 2, vVa + 3
        a(f"v_bfe_u32 v{t0}, v{vLane}, 2, 2\nv_and_b32 v{t1}, 1, v{vG}\nv_lshl_add_u32 v{t1}, v{t1}, 2, v{t0}\nv_lshlrev_b32 v{t2}, 1, v{t1}")
        a(f"v_bfe_u32 v{t1}, v{vLane}, 1, 1\nv_xor_b32 v{t1}, v{t1}, v{t2}\nv_lshl_add_u32 v{t0}, v{vG}, 2, v{t0}\nv_lshlrev_b32 v{t0}, 8, v{t0}")
        a(f"v_lshl_add_u32 v{t0}, v{t1}, 4, v{t0}\nv_and_b32 v{t1}, 1, v{vLane}\nv_lshl_add_u32 v{t0}, v{t1}, 3, v{t0}\nv_add_u32 v{vVa}, {VB}, v{t0}")
        for k in range(1, 8):
            a(f"v_xor_b32 v{vVa+k}, {32*k}, v{vVa}")

    def rdK(u):
        for s in range(4):
            for i2 in range(2):
                a(f"ds_read_b64 {ar(16*u+4*s+2*i2,2)}, v{vKa+2*s+i2} offset:{4096*u}")

    a(f"; @launch grid=(256,1,1) block=(512,1,1) lds=163840")
    a('.amdgcn_target "amdgcn-amd-amdhsa--gfx950"\n.text')
    a(f".globl {KNAME}\n.p2align 8\n.type {KNAME},@function")
    a.label(KNAME)
    a("s_cmp_ge_u32 s2, 256\ns_cbranch_scc1 L_end")
    a("s_load_dwordx16 s[4:19], s[0:1], 0")
    if pad >= 0:
        a("s_memrealtime s[100:101]")
    if ts:
        a(f"v_mov_b32 v{vTS}, 0\ns_memrealtime s[98:99]\ns_memtime s[{sTm}:{sTm+1}]")
    a(f"v_lshrrev_b32 v6, 6, v0\nv_and_b32 v{vLane}, 63, v0")
    a(f"v_readfirstlane_b32 s{sWave}, v6")
    a(f"v_and_b32 v{vL15}, 15, v0\nv_lshrrev_b32 v{vG}, 4, v{vLane}\nv_lshlrev_b32 v{vL16}, 4, v{vLane}")
    a(f"s_and_b32 s{sXc}, s2, 7\ns_bfe_u32 s{sHH}, s2, 0x20003\ns_lshr_b32 s{sB}, s2, 5")
    a(f"s_lshl_b32 s{sH}, s{sXc}, 2\ns_add_u32 s{sH}, s{sH}, s{sHH}")
    a(f"s_lshr_b32 s{sG}, s{sXc}, 1\ns_and_b32 s{sJ}, s{sH}, 7")
    a(f"s_cmp_lt_u32 s{sWave}, 4\ns_cbranch_scc1 L_compute")

    vX, vW, vWoD = 8, 11, 15
    a(f"s_sub_u32 s{sT7}, s{sWave}, 4")
    a(f"s_mul_i32 s{sT0}, s{sT7}, 20\nv_lshrrev_b32 v6, 3, v{vLane}\nv_add_u32 v6, s{sT0}, v6\nv_and_b32 v7, 7, v{vLane}")
    for i in range(3):
        a(f"v_add_u32 v20, {8*i}, v6\nv_bfe_u32 v21, v20, 1, 3\nv_xor_b32 v21, v21, v7\nv_lshlrev_b32 v21, 4, v21")
        a(f"v_lshl_add_u32 v21, v20, 11, v21\nv_subrev_u32 v{vX+i}, {1024*i}, v21")
    a(f"s_lshl_b32 s{sT0}, s{sT7}, 4\nv_add_u32 v6, s{sT0}, v{vG}")
    for i in range(4):
        a(f"v_add_u32 v20, {4*i}, v6\nv_add_u32 v21, {4*((i>>1)&1)}, v{vG}\nv_lshlrev_b32 v21, 1, v21\nv_xor_b32 v21, v21, v{vL15}")
        a(f"v_lshlrev_b32 v21, 4, v21\nv_lshl_add_u32 v21, v20, 13, v21\nv_subrev_u32 v{vW+i}, {1024*i}, v21")
    a(f"s_mul_i32 s{sLX}, s{sT7}, 2560\ns_lshl_b32 s{sLW}, s{sT7}, 12\ns_add_u32 s{sLW}, s{sLW}, {WOFF}")
    if rot == "A":
        a(f"s_lshl_b32 s{sCh}, s{sHH}, 1\ns_add_u32 s{sCh}, s{sCh}, s{sB}\ns_lshl_b32 s{sCh}, s{sCh}, 1\ns_and_b32 s{sCh}, s{sCh}, 15")
    elif rot == "B":
        a(f"s_add_u32 s{sCh}, s{sB}, s{sXc}\ns_lshl_b32 s{sCh}, s{sCh}, 1\ns_and_b32 s{sCh}, s{sCh}, 15")
    elif rot == "D":
        a(f"s_lshl_b32 s{sCh}, s{sB}, 1")
    else:
        a(f"s_mov_b32 s{sCh}, 0")
    a(f"s_mov_b32 s{sSlot}, {SLOT}")
    a(f"s_mul_i32 s{sT0}, s{sB}, 163840\ns_lshl_b32 s{sT1}, s{sH}, 8\ns_sub_u32 s{sT2}, 0x800000, s{sT1}")
    a("s_waitcnt lgkmcnt(0)")
    if ts:
        a(f"v_writelane_b32 v{vTS}, s{sTm}, 0\nv_writelane_b32 v{vTS}, s98, 62")
    mk_srd(sX, 4, f"s{sT0}", 163840)
    mk_srd(sW, 10, f"s{sT1}", f"s{sT2}")

    def issue_stage():
        a(f"s_add_u32 m0, s{sSlot}, s{sLX}\ns_lshl_b32 s{sT0}, s{sCh}, 7\ns_lshl_b32 s{sT1}, s{sCh}, 19")
        a(f"buffer_load_dwordx4 v{vX}, {srd(sX)}, s{sT0} offen {px} lds")
        a(f"buffer_load_dwordx4 v{vX+1}, {srd(sX)}, s{sT0} offen offset:1024 {px} lds")
        a("s_mov_b32 exec_hi, 0")
        a(f"buffer_load_dwordx4 v{vX+2}, {srd(sX)}, s{sT0} offen offset:2048 {px} lds")
        a(f"s_add_u32 m0, s{sSlot}, s{sLW}\ns_mov_b32 exec_hi, -1")
        for i in range(4):
            a(f"buffer_load_dwordx4 v{vW+i}, {srd(sW)}, s{sT1} offen offset:{1024*i} {pw} lds")
        a(f"s_add_u32 s{sCh}, s{sCh}, 1\ns_and_b32 s{sCh}, s{sCh}, 15")
        a(f"s_add_u32 s{sSlot}, s{sSlot}, {SLOT}\ns_cmp_eq_u32 s{sSlot}, {4*SLOT}\ns_cselect_b32 s{sSlot}, 0, s{sSlot}")

    for _ in range(2):
        issue_stage()
    late_srds()
    for i in range(4):
        a(f"v_add_u32 v20, {4*i}, v{vG}\nv_add_u32 v21, {4*(i&1)}, v{vG}\nv_lshlrev_b32 v21, 1, v21\nv_xor_b32 v21, v21, v{vL15}")
        a(f"v_lshlrev_b32 v21, 4, v21\nv_lshl_add_u32 v21, v20, 11, v21\nv_subrev_u32 v{vWoD+i}, {1024*i}, v21")
    vKd, vVd = 6, 7
    a(f"s_lshl_b32 s{sT0}, s{sNQ}, 2")
    a(f"v_add_u32 v20, s{sT0}, v{vG}\nv_xor_b32 v21, v20, v{vL15}\nv_lshlrev_b32 v21, 4, v21\nv_lshl_add_u32 v{vKd}, v20, 8, v21")
    a(f"v_and_b32 v21, 7, v20\nv_lshlrev_b32 v21, 1, v21\nv_xor_b32 v21, v21, v{vL15}\nv_lshlrev_b32 v21, 4, v21\nv_lshl_add_u32 v{vVd}, v20, 8, v21")
    a(f"s_lshr_b32 s{sT0}, s2, 3\ns_and_b32 s{sT0}, s{sT0}, {kvs}\ns_add_u32 s{sItK}, s{sT0}, {kvk}\ns_add_u32 s{sItV}, s{sT0}, {kvv}")
    k_addr()
    a(f"s_mov_b32 s{sI}, 0\ns_waitcnt vmcnt(7)")
    a.label("L_lloop")
    a("s_barrier")
    stamp_i(1)
    issue_stage()
    for nm, sr, base, vd, it in (("k", sK, KB, vKd, sItK), ("v", sV, VB, vVd, sItV)):
        a(f"s_cmp_lg_u32 s{sI}, s{it}\ns_cbranch_scc1 L_l_no{nm}")
        a(f"s_lshl_b32 s{sT1}, s{sNQ}, 10")
        for m in range(5):
            a(f"s_add_u32 m0, s{sT1}, {base + 4096*m}\ns_movk_i32 s{sT0}, {4096*m}")
            a(f"buffer_load_dwordx4 v{vd}, {srd(sr)}, s{sT0} offen {pkv} lds")
        a("s_waitcnt vmcnt(12)\ns_branch L_l_next")
        a.label(f"L_l_no{nm}")
    a("s_waitcnt vmcnt(7)")
    a.label("L_l_next")
    a(f"s_add_u32 s{sI}, s{sI}, 1\ns_cmp_lt_u32 s{sI}, 14\ns_cbranch_scc1 L_lloop")

    def wo_block(lds_s, m_s, kh_s):
        a(f"s_add_u32 s{sT0}, {m_s}, s{sRb}\ns_and_b32 s{sT0}, s{sT0}, 15\ns_lshl_b32 s{sT0}, s{sT0}, 16")
        a(f"s_lshl_b32 s{sT1}, {kh_s}, 20\ns_mov_b32 m0, {lds_s}\ns_add_u32 s{sT0}, s{sT0}, s{sT1}")
        for i in range(4):
            a(f"buffer_load_dwordx4 v{vWoD+i}, {srd(sWo)}, s{sT0} offen offset:{1024*i} {pwo} lds")
        a(f"s_add_u32 m0, {lds_s}, 4096\ns_add_u32 s{sT0}, s{sT0}, 32768")
        for i in range(4):
            a(f"buffer_load_dwordx4 v{vWoD+i}, {srd(sWo)}, s{sT0} offen offset:{1024*i} {pwo} lds")

    def wo_batch(bt):
        a(f"s_and_b32 s{sT2}, s{sWave}, 1\ns_bfe_u32 s{sT3}, s{sWave}, 0x10001")
        a(f"s_cmp_eq_u32 s{sT3}, 0\ns_cselect_b32 s{sT4}, {UNIT0[2*bt]}, {UNIT0[2*bt+1]}")
        a(f"s_add_u32 s{sT4}, s{sT4}, s{sT2}\ns_lshl_b32 s{sT4}, s{sT4}, 13\ns_add_u32 s{sT3}, s{sT3}, {2*bt}")
        wo_block(f"s{sT4}", f"s{sT3}", f"s{sT2}")

    def wo_late(m):
        a(f"s_and_b32 s{sT2}, s{sWave}, 1\ns_add_u32 s{sT4}, s{sT2}, {UNIT0[m]}\ns_lshl_b32 s{sT4}, s{sT4}, 13")
        wo_block(f"s{sT4}", str(m), f"s{sT2}")

    a("s_barrier")
    stamp(15)
    wo_batch(0)
    a("s_waitcnt vmcnt(8)\ns_barrier")
    stamp(16)
    a(f"s_cmp_lg_u32 s{sWave}, 4\ns_cbranch_scc1 L_l_noattn")
    for u in range(5):
        rdK(u)
    v_addr()
    a("s_branch L_barQ")
    a.label("L_l_noattn")
    a("s_barrier")
    stamp(17)
    a(f"v_mov_b32 v{vEp}, {EPL}\nds_read_b32 v{vEp}, v{vEp}")
    a(f"s_cmp_eq_u32 s{sWave}, 5\ns_cbranch_scc1 L_ld_wait")
    for m in range(2, 6):
        wo_late(m)
    a.label("L_ld_wait")
    a("s_waitcnt vmcnt(0) lgkmcnt(0)\ns_branch L_barA")

    a.label("L_compute")
    vXa, vWa, cX, cW = 6, 8, 10, 12
    X0, W0, X1, W1, ACC = 16, 36, 44, 64, 72
    vSw = 112
    a(f"v_lshrrev_b32 v20, 1, v{vL15}\nv_xor_b32 v20, v20, v{vG}\nv_lshlrev_b32 v20, 4, v20\nv_lshl_add_u32 v{vXa}, v{vL15}, 7, v20")
    a(f"v_xor_b32 v{vXa+1}, 64, v{vXa}")
    a(f"v_bfe_u32 v20, v{vLane}, 2, 2\nv_and_b32 v21, 1, v{vG}\nv_lshl_add_u32 v21, v21, 2, v20\nv_lshlrev_b32 v{vSw}, 1, v21")
    a(f"s_lshl_b32 s{sT0}, s{sWave}, 2\nv_bfe_u32 v21, v{vLane}, 1, 1\nv_add_u32 v21, s{sT0}, v21\nv_xor_b32 v21, v21, v{vSw}")
    a(f"v_lshl_add_u32 v20, v{vG}, 3, v20\nv_lshlrev_b32 v20, 8, v20\nv_lshl_add_u32 v20, v21, 4, v20")
    a(f"v_and_b32 v21, 1, v{vLane}\nv_lshl_add_u32 v20, v21, 3, v20\nv_add_u32 v{vWa}, {WOFF}, v20\nv_xor_b32 v{vWa+1}, 32, v{vWa}")
    k_addr()
    for r in range(X1, ACC + 40):
        a(f"v_mov_b32 v{r}, 0")
    a(f"s_mov_b32 s{sSlot}, {SLOT}")
    for k in range(2):
        a(f"v_add_u32 v{cX+k}, s{sSlot}, v{vXa+k}\nv_add_u32 v{cW+k}, s{sSlot}, v{vWa+k}")
    a("s_waitcnt lgkmcnt(0)")
    if ts:
        a(f"v_writelane_b32 v{vTS}, s{sTm}, 0\nv_writelane_b32 v{vTS}, s98, 62")
    late_srds()
    a(f"s_cmp_lg_u32 s{sWave}, 0\ns_cbranch_scc1 L_noep")
    a(f"s_lshl_b32 s{sT0}, s{sB}, 7\ns_add_u32 s{sT0}, s{sT0}, {ws_off + E_OFF}")
    a(f"s_add_u32 s{sX}, s18, s{sT0}\ns_addc_u32 s{sX+1}, s19, 0\ns_mov_b32 s{sX+2}, 4\ns_mov_b32 s{sX+3}, 0x20000")
    a(f"v_mov_b32 v14, 0\nbuffer_load_dword v15, v14, {srd(sX)}, 0 offen sc1")
    a.label("L_noep")
    a(f"s_mov_b32 s{sI}, 0")

    def rd_set(X, W, s):
        r = []
        r.append(f"ds_read_b64_tr_b16 {vr(W,2)}, v{cW} offset:{8192*s}")
        r.append(f"ds_read_b64_tr_b16 {vr(W+2,2)}, v{cW} offset:{8192*s+1024}")
        r.append(f"ds_read_b128 {vr(X,4)}, v{cX+s}")
        r.append(f"ds_read_b64_tr_b16 {vr(W+4,2)}, v{cW+1} offset:{8192*s}")
        r.append(f"ds_read_b64_tr_b16 {vr(W+6,2)}, v{cW+1} offset:{8192*s+1024}")
        for t in range(1, 5):
            r.append(f"ds_read_b128 {vr(X+4*t,4)}, v{cX+s} offset:{2048*t}")
        return r

    def mm_set(X, W):
        return [f"v_mfma_f32_16x16x32_bf16 {vr(ACC+8*t+4*d,4)}, {vr(W+4*d,4)}, {vr(X+4*t,4)}, {vr(ACC+8*t+4*d,4)}"
                for t in range(5) for d in range(2)]

    a.label("L_cloop")
    a("s_barrier")
    r0, r1, m0_, m1_ = rd_set(X0, W0, 0), rd_set(X1, W1, 1), mm_set(X0, W0), mm_set(X1, W1)
    for k in range(10):
        if k < 9:
            a(r0[k])
        a(m1_[k])
    waits = {0: 6, 1: 5, 2: 5, 4: 6, 6: 7, 8: 8}
    for k in range(10):
        if k in waits:
            a(f"s_waitcnt lgkmcnt({waits[k]})")
        a(m0_[k])
        if k < 9:
            a(r1[k])
    a(f"s_add_u32 s{sSlot}, s{sSlot}, {SLOT}\ns_cmp_eq_u32 s{sSlot}, {4*SLOT}\ns_cselect_b32 s{sSlot}, 0, s{sSlot}")
    for k in range(2):
        a(f"v_add_u32 v{cX+k}, s{sSlot}, v{vXa+k}\nv_add_u32 v{cW+k}, s{sSlot}, v{vWa+k}")
    a(f"s_cmp_lt_u32 s{sI}, 10\ns_cbranch_scc1 L_c_next")
    for u in range(5):
        a(f"s_cmp_lg_u32 s{sI}, {10+u}\ns_cbranch_scc1 L_c_k{u+1}")
        rdK(u)
        if u == 4:
            v_addr()
        else:
            a("s_branch L_c_next")
        a.label(f"L_c_k{u+1}")
    a.label("L_c_next")
    a(f"s_add_u32 s{sI}, s{sI}, 1\ns_cmp_lt_u32 s{sI}, 16\ns_waitcnt lgkmcnt(0)\ns_cbranch_scc1 L_cloop")
    for m in m1_:
        a(m)
    stamp(1)
    a(f"s_lshl_b32 s{sT0}, s{sWave}, 10\ns_add_u32 s{sT0}, s{sT0}, {QX}\nv_add_u32 v6, s{sT0}, v{vL16}")
    for t in range(5):
        if t == 4:
            a("s_nop 3")
        for k in range(4):
            a(f"v_cvt_pk_bf16_f32 v{16+4*t+k}, v{ACC+8*t+2*k}, v{ACC+8*t+2*k+1}")
        a(f"ds_write_b128 v6, {vr(16+4*t,4)} offset:{4096*t}")
    a(f"s_cmp_lg_u32 s{sWave}, 0\ns_cbranch_scc1 L_barQ")
    a(f"v_mov_b32 v14, {EPL}\ns_waitcnt vmcnt(0)\nv_add_u32 v15, 1, v15\nds_write_b32 v14, v15")
    a.label("L_barQ")
    a("s_waitcnt lgkmcnt(0)\ns_barrier")
    stamp(17)

    Q, S, P, OA, SUM = 16, 32, 52, 66, 108
    if prT:
        a(f"s_cmp_lg_u32 s{sWave}, 0\ns_cbranch_scc1 L_noprio\ns_setprio 1")
        a.label("L_noprio")
    a(f"v_mov_b32 v{vEp}, {EPL}\nds_read_b32 v{vEp}, v{vEp}")
    for s in range(4):
        a(f"ds_read_b128 {vr(Q+4*s,4)}, v{vQa} offset:{1024*s}")

    def vreg(dt):
        return 80 + 10 * dt if dt < 4 else 10 * (dt - 4)

    def rdV(dt):
        return [f"ds_read_b64_tr_b16 {ar(vreg(dt)+2*kb,2)}, v{vVa+dt} offset:{4096*kb}" for kb in range(5)]

    vq = [x for dt in range(8) for x in rdV(dt)]
    for s in range(4):
        a(f"s_waitcnt lgkmcnt({3 if s == 0 else min(15, 3 - s + 5 * s)})")
        for u in range(5):
            c = "0" if s == 0 else vr(S + 4 * u, 4)
            a(f"v_mfma_f32_16x16x32_bf16 {vr(S+4*u,4)}, {ar(16*u+4*s,4)}, {vr(Q+4*s,4)}, {c}")
            a(vq.pop(0))
    a("s_nop 4")
    seq = []
    seq.append(f"v_max3_f32 v14, v{S}, v{S+1}, v{S+2}")
    seq.append(f"v_max3_f32 v15, v{S+3}, v{S+4}, v{S+5}")
    for k in range(6, 16, 4):
        seq.append(f"v_max3_f32 v14, v14, v{S+k}, v{S+k+1}")
        if k + 3 < 16:
            seq.append(f"v_max3_f32 v15, v15, v{S+k+2}, v{S+k+3}")
    seq.append("s_nop 0")
    seq.append(f"v_max3_f32 v15, v15, v{S+16}, v{S+17}")
    seq.append(f"v_max3_f32 v14, v14, v{S+18}, v{S+19}")
    seq.append("v_max_f32 v14, v14, v15")
    seq.append("v_mov_b32 v15, v14\ns_nop 1\nv_permlane32_swap_b32 v14, v15")
    seq.append("v_max_f32 v14, v14, v15")
    seq.append("v_mov_b32 v15, v14\ns_nop 1\nv_permlane16_swap_b32 v14, v15")
    seq.append("v_max_f32 v14, v14, v15")
    seq.append(f"v_mul_f32 v14, s{sC}, v14")
    for k in range(20):
        seq.append(f"v_fma_f32 v{S+k}, v{S+k}, s{sC}, -v14")
    for k in range(20):
        seq.append(f"v_exp_f32 v{S+k}, v{S+k}")
    seq.append("s_nop 0")
    for k in [8, 9, 0, 1, 2, 3, 4, 5, 6, 7]:
        seq.append(f"v_cvt_pk_bf16_f32 v{P+k}, v{S+2*k}, v{S+2*k+1}")
    for k, x in enumerate(seq):
        a(x)
        if vq and k >= 1 and k % 2 == 1:
            a(vq.pop(0))
    for x in vq:
        a(x)
    a("s_waitcnt lgkmcnt(0)")
    dump([f"v{S+k}" for k in range(20)] + [f"v{P+k}" for k in range(10)] + [f"a{vreg(0)+k}" for k in range(10)], 36)
    a(f"v_mfma_f32_16x16x16_bf16 {vr(SUM,4)}, {vr(ONE,2)}, {vr(P+8,2)}, 0")
    for dt in range(8):
        a(f"v_mfma_f32_16x16x16_bf16 {vr(OA+4*dt,4)}, {ar(vreg(dt)+8,2)}, {vr(P+8,2)}, 0")
    a(f"v_mfma_f32_16x16x32_bf16 {vr(SUM,4)}, {vr(ONE,4)}, {vr(P,4)}, {vr(SUM,4)}")
    a(f"v_mfma_f32_16x16x32_bf16 {vr(SUM,4)}, {vr(ONE,4)}, {vr(P+4,4)}, {vr(SUM,4)}")
    for dt in range(8):
        o = vr(OA + 4 * dt, 4)
        a(f"v_mfma_f32_16x16x32_bf16 {o}, {ar(vreg(dt),4)}, {vr(P,4)}, {o}")
        a(f"v_mfma_f32_16x16x32_bf16 {o}, {ar(vreg(dt)+4,4)}, {vr(P+4,4)}, {o}")
        if dt == 3:
            a(f"v_rcp_f32 v14, v{SUM}")
        if dt >= 4:
            d = dt - 4
            for r in range(4):
                a(f"v_mul_f32 v{OA+4*d+r}, v14, v{OA+4*d+r}")
    dump([f"v{SUM+k}" for k in range(4)] + ["v14"] + [f"v{OA+k}" for k in range(32)], 76)
    a(f"s_lshl_b32 s{sT0}, s{sWave}, 15\ns_lshl_b32 s{sT1}, s{sJ}, 12\ns_add_u32 s{sT0}, s{sT0}, s{sT1}")
    for v in range(4):
        for d in (2 * v, 2 * v + 1):
            if d >= 4:
                for r in range(4):
                    a(f"v_mul_f32 v{OA+4*d+r}, v14, v{OA+4*d+r}")
        for k in range(4):
            a(f"v_cvt_pk_bf16_f32 v{Q+4*v+k}, v{OA+8*v+2*k}, v{OA+8*v+2*k+1}")
        a(f"buffer_store_dwordx4 {vr(Q+4*v,4)}, v{vL16}, {srd(sO)}, s{sT0} offen offset:{1024*v} sc1")
    a("s_waitcnt vmcnt(4)")

    a.label("L_barA")
    vWoA = 22
    a(f"v_readfirstlane_b32 s{sEp}, v{vEp}")
    a(f"v_bfe_u32 v20, v{vLane}, 2, 2\nv_and_b32 v21, 1, v{vG}\nv_lshl_add_u32 v21, v21, 2, v20\nv_lshlrev_b32 v28, 1, v21")
    a(f"s_lshl_b32 s{sT0}, s{sNQ}, 2\nv_bfe_u32 v21, v{vLane}, 1, 1\nv_add_u32 v21, s{sT0}, v21\nv_xor_b32 v21, v21, v28")
    a(f"v_lshl_add_u32 v20, v{vG}, 2, v20\nv_lshlrev_b32 v20, 8, v20\nv_lshl_add_u32 v20, v21, 4, v20")
    a(f"v_and_b32 v21, 1, v{vLane}\nv_lshl_add_u32 v20, v21, 3, v20\ns_lshl_b32 s{sT0}, s{sKH}, 13\nv_add_u32 v{vWoA}, s{sT0}, v20")
    a(f"v_xor_b32 v{vWoA+1}, 32, v{vWoA}")
    for k in range(2):
        a(f"v_add_u32 v{vWoA+2+k}, 0x10000, v{vWoA+k}\nv_add_u32 v{vWoA+4+k}, 0x20000, v{vWoA+k}")
    if prT:
        a("s_setprio 0")
    a("s_barrier")
    stamp(18)

    def rd_wo(m):
        base = UNIT0[m] * 8192
        out = []
        for nt in range(2):
            for u in range(2):
                out.append(f"ds_read_b64_tr_b16 {ar(8*m+4*nt+2*u,2)}, v{vWoA+2*(base>>16)+nt} offset:{(base & 0xffff)+4096*u}")
        return out

    def tile_of(p):
        if p == 0:
            a(f"s_mov_b32 s{sTile}, 4")
        else:
            a(f"s_add_u32 s{sTile}, s{sOwn}, {p}\ns_and_b32 s{sTile}, s{sTile}, 3")

    def o_half(p):
        out = []
        t = "4" if p == 0 else f"s{sTile}"
        pre = "" if p == 0 else f"s_add_u32 s{sTile}, s{sOwn}, {p}\ns_and_b32 s{sTile}, s{sTile}, 3\n"
        pre += f"s_and_b32 s{sT2}, s{sWave}, 1\ns_lshl_b32 s{sT2}, s{sT2}, 14\ns_lshl_b32 s{sT3}, {t}, 15\ns_add_u32 s{sT3}, s{sT3}, s{sT2}\n"
        pre += f"s_add_u32 s{sT2}, s{sT2}, {OPOS[p]}\ns_lshl_b32 s{sT4}, s{sRb}, 10\n"
        for m in range(16):
            x = pre if m == 0 else ""
            x += f"s_add_u32 m0, s{sT2}, {1024*m}\ns_add_u32 s{sT0}, s{sT3}, s{sT4}\n"
            x += f"buffer_load_dwordx4 v{vL16}, {srd(sO)}, s{sT0} offen sc1 lds\n"
            x += f"s_add_u32 s{sT4}, s{sT4}, 1024\ns_and_b32 s{sT4}, s{sT4}, 0x3fff"
            out.append(x)
        return out

    a(f"s_cmp_ge_u32 s{sWave}, 6\ns_cbranch_scc1 L_wo_ld")
    for m in range(6):
        for x in rd_wo(m):
            a(x)
    a("s_waitcnt lgkmcnt(0)\ns_barrier")
    a(f"s_cmp_eq_u32 s{sWave}, 5\ns_cbranch_scc1 L_noflag")
    a(f"s_lshl_b32 s{sT0}, s{sWave}, 5\ns_lshl_b32 s{sT1}, s{sJ}, 2\ns_add_u32 s{sT0}, s{sT0}, s{sT1}")
    a(f"v_mov_b32 v20, s{sEp}\nv_mov_b32 v21, 0\ns_mov_b64 exec, 1\ns_waitcnt vmcnt(0)")
    a(f"buffer_store_dword v20, v21, {srd(sF)}, s{sT0} offen sc1\ns_mov_b64 exec, -1")
    stamp(20)
    a.label("L_noflag")
    a("s_barrier")
    stamp(19)
    for m in range(6, 10):
        for x in rd_wo(m):
            a(x)
    a(f"s_cmp_lg_u32 s{sWave}, 5\ns_cbranch_scc1 L_polled")
    a(f"v_lshlrev_b32 v20, 2, v{vLane}\ns_mov_b32 exec_hi, 0xff\ns_mov_b32 s{sT1}, 0")
    a.label("L_poll")
    a(f"buffer_load_dword v21, v20, {srd(sF)}, 0 offen sc1\ns_add_u32 s{sT1}, s{sT1}, 1\ns_waitcnt vmcnt(0)")
    a(f"v_cmp_ne_u32 vcc, s{sEp}, v21\ns_cmp_gt_u32 s{sT1}, {SPIN}\ns_cbranch_scc1 L_poll_done\ns_cbranch_vccnz L_poll")
    a.label("L_poll_done")
    a("s_mov_b32 exec_hi, -1")
    a.label("L_polled")
    a("s_waitcnt lgkmcnt(0)\ns_barrier")
    stamp(22)
    a("s_barrier")
    stamp(21)
    for m in range(10, 16):
        for x in rd_wo(m):
            a(x)
    a("s_branch L_p2pre")
    a.label("L_wo_ld")
    for m in range(6, 10):
        wo_late(m)
        for x in rd_wo(m - 6):
            a(x)
    for m in range(4, 6):
        for x in rd_wo(m):
            a(x)
    a("s_waitcnt lgkmcnt(0)\ns_barrier")
    wo_late(10)
    wo_late(11)
    a("s_waitcnt vmcnt(16)\ns_barrier")
    for m in range(12, 16):
        wo_late(m)
        for x in rd_wo(m - 6):
            a(x)
    a("s_waitcnt lgkmcnt(0)\ns_barrier")
    stamp(22)
    for x in o_half(0):
        a(x)
    a("s_waitcnt vmcnt(16)\ns_barrier")
    stamp(21)
    rq = [x for m in range(10, 16) for x in rd_wo(m)]
    for x in rq[:8]:
        a(x)
    for x, y in zip(o_half(1), rq[8:]):
        a(x)
        a(y)
    a("s_waitcnt vmcnt(16)")
    a.label("L_p2pre")

    vOa, vScr, FR, AC, KEEP, TMP, vOut, vTag = 6, 11, 16, 48, 64, 72, 8, 13
    T4 = 96
    MP = [int(x) for x in mp.split(",")]
    for ii in range(4):
        a(f"s_lshl_b32 s{sT0}, s{sNQ}, 2\ns_add_u32 s{sT0}, s{sT0}, s{sRb}\ns_add_u32 s{sT0}, s{sT0}, {ii}\ns_and_b32 s{sT0}, s{sT0}, 15")
        a(f"s_lshl_b32 s{sT1}, s{sKH}, 4\ns_add_u32 s{sT0}, s{sT0}, s{sT1}\ns_lshl_b32 s{sOo+ii}, s{sT0}, 10")
    a(f"s_lshl_b32 s{sT0}, s{sKH}, 14\nv_add_u32 v9, s{sT0}, v{vL16}")
    a(f"s_lshl_b32 s{sT0}, s{sNQ}, 11\nv_add_u32 v10, s{sT0}, v{vL16}")
    a(f"v_lshlrev_b32 v20, 11, v{vL15}\nv_and_b32 v21, 1, v{vG}\nv_lshl_add_u32 v20, v21, 5, v20\nv_lshrrev_b32 v21, 1, v{vG}")
    a(f"v_lshl_add_u32 v{vOut}, v21, 4, v20")
    a(f"v_add_u32 v{vOa}, {OPOS[0]}, v9\nv_add_u32 v{vOa+1}, {OPOS[1]}, v9")
    a(f"v_add_u32 v{vScr}, {SCR[0]}, v10\nv_add_u32 v{vScr+1}, {SCR[1]}, v10")
    a(f"s_and_b32 s{sT0}, s{sEp}, 0xff\nv_mov_b32 v{vTag}, s{sT0}")
    a("s_waitcnt lgkmcnt(0)\ns_barrier")
    stamp(23)

    def o_dma_one(p, ii):
        x = ""
        if ii == 0:
            x = f"s_add_u32 s{sTile}, s{sOwn}, {p}\ns_and_b32 s{sTile}, s{sTile}, 3\n"
            x += f"s_lshl_b32 s{sT2}, s{sTile}, 15\ns_lshl_b32 s{sT3}, s{sWave}, 12\ns_add_u32 s{sT3}, s{sT3}, {OPOS[p]}\n"
        x += f"s_add_u32 m0, s{sT3}, {1024*ii}\ns_add_u32 s{sT0}, s{sT2}, s{sOo+ii}\n"
        x += f"buffer_load_dwordx4 v{vL16}, {srd(sO)}, s{sT0} offen sc1 lds"
        return x

    class Q_:
        def __init__(self, name, cap):
            self.name, self.cap, self.ops = name, cap, []
        def push(self, tag):
            self.ops.append(tag)
        def wait(self, tag):
            if tag not in self.ops:
                return
            i = len(self.ops) - 1 - self.ops[::-1].index(tag)
            n = len(self.ops) - 1 - i
            a(f"s_waitcnt {self.name}({min(n, self.cap)})")
            self.ops = self.ops[i + 1:]

    def check_tags(base, n, tag, loads):
        a(f"s_mov_b32 s{sT5}, 0\ns_branch L_chk_{tag}")
        a.label(f"L_again_{tag}")
        a(loads)
        a(f"s_add_u32 s{sT5}, s{sT5}, 1\ns_waitcnt vmcnt(0)")
        a.label(f"L_chk_{tag}")
        for k in range(n):
            a(f"v_xor_b32 v{base+k}, v{vTag}, v{base+k}")
        a(f"v_or3_b32 v14, v{base}, v{base+1}, v{base+2}")
        for k in range(3, n - 1, 2):
            a(f"v_or3_b32 v14, v14, v{base+k}, v{base+k+1}")
        a(f"v_or_b32 v14, v14, v{base+n-1}\nv_and_b32 v14, s{sMask}, v14")
        a(f"v_cmp_ne_u32 vcc, 0, v14\ns_cmp_gt_u32 s{sT5}, {SPIN}\ns_cbranch_scc1 L_got_{tag}\ns_cbranch_vccnz L_again_{tag}")
        a.label(f"L_got_{tag}")

    def ib_loads(base, slot_s, rels):
        x = []
        for k, r in enumerate(rels):
            x.append(f"s_add_u32 s{sT1}, {slot_s}, {10240*r}")
            x.append(f"buffer_load_dwordx4 {vr(base+8*k,4)}, v{vL16}, {srd(sIB)}, s{sT1} offen sc1")
            x.append(f"buffer_load_dwordx4 {vr(base+8*k+4,4)}, v{vL16}, {srd(sIB)}, s{sT1} offen offset:1024 sc1")
        return "\n".join(x)

    def out_store(acc, tmp, tile_s):
        for k in range(4):
            a(f"v_cvt_pk_bf16_f32 v{tmp+k}, v{acc+2*k}, v{acc+2*k+1}")
        a(f"s_mul_i32 s{sT1}, s{sB}, 5\ns_add_u32 s{sT1}, s{sT1}, {tile_s}\ns_lshl_b32 s{sT1}, s{sT1}, 15")
        a(f"v_permlane16_swap_b32 v{tmp}, v{tmp+2}\nv_permlane16_swap_b32 v{tmp+1}, v{tmp+3}")
        a(f"s_lshl_b32 s{sT4}, s{sJ}, 8\ns_add_u32 s{sT1}, s{sT1}, s{sT4}\ns_lshl_b32 s{sT4}, s{sNQ}, 6\ns_add_u32 s{sT1}, s{sT1}, s{sT4}")
        a(f"buffer_store_dwordx4 {vr(tmp,4)}, v{vOut}, {srd(sOut)}, s{sT1} offen")

    def send(acc):
        for k in range(8):
            a(f"v_bfi_b32 v{TMP+k}, s{sMask}, v{vTag}, v{acc+k}")
        a(f"buffer_store_dwordx4 {vr(TMP,4)}, v{vL16}, {srd(sIB)}, s{sT0} offen sc1")
        a(f"buffer_store_dwordx4 {vr(TMP+4,4)}, v{vL16}, {srd(sIB)}, s{sT0} offen offset:1024 sc1")

    def stream(role):
        lg, vm = Q_("lgkmcnt", 15), Q_("vmcnt", 63)
        vm.push("o1")

        def rd(g):
            p, m = divmod(g, 16)
            a(f"ds_read_b128 {vr(FR+4*(g % depth),4)}, v{vOa + (p & 1)} offset:{1024*m}")
            lg.push(("f", g))

        for g in range(depth):
            rd(g)
        dma = {}
        for ii in range(4):
            dma[1 + 2 * ii] = (2, ii)
            dma[MP[0] + 1 + ii if MP[0] + 4 < 16 else 9 + ii] = (3, ii)
            dma[16 + MP[1] + 1 + 2 * ii] = (4, ii)
        for g in range(80):
            p, m = divmod(g, 16)
            acc = AC + 8 * (p & 1)
            prev = AC + 8 * ((p + 1) & 1)
            lg.wait(("f", g))
            for nt in range(2):
                c = "0" if m == 0 else vr(acc + 4 * nt, 4)
                a(f"v_mfma_f32_16x16x32_bf16 {vr(acc+4*nt,4)}, {ar(8*m+4*nt,4)}, {vr(FR+4*(g % depth),4)}, {c}")
            if role == "A" and p >= 1 and m == 1:
                a(f"s_nop 1\nds_write_b128 v{vScr + ((p-1) & 1)}, {vr(prev,4)}\nds_write_b128 v{vScr + ((p-1) & 1)}, {vr(prev+4,4)} offset:1024")
                lg.push("w"); lg.push("w")
            if m == MP[p]:
                if role == "A":
                    lg.wait("w")
                if p < 4:
                    vm.wait(f"o{p+1}")
                a("s_barrier")
                stamp_light(24 + p)
                if role == "B" and p >= 1:
                    a(f"ds_read_b128 {vr(TMP,4)}, v{vScr + ((p-1) & 1)}\nds_read_b128 {vr(TMP+4,4)}, v{vScr + ((p-1) & 1)} offset:1024")
                    lg.push("s"); lg.push("s")
            if g + depth < 80:
                if (g + depth) % 16 == 0 and (g + depth) // 16 >= 2:
                    pn = (g + depth) // 16
                    a(f"v_add_u32 v{vOa + (pn & 1)}, {OPOS[pn]}, v9")
                rd(g + depth)
            if g in dma:
                a(o_dma_one(*dma[g]))
                vm.push(f"o{dma[g][0]}")
            if role == "B" and p >= 1 and m == MP[p] + 3:
                lg.wait("s")
                for k in range(8):
                    a(f"v_add_f32 v{prev+k}, v{prev+k}, v{TMP+k}")
                if p == 1:
                    a(f"s_cmp_eq_u32 s{sNQ}, s{sG}\ns_cbranch_scc1 L_keep")
                    a(f"s_and_b32 s{sT0}, s2, 0xf9\ns_lshl_b32 s{sT1}, s{sNQ}, 1\ns_or_b32 s{sT0}, s{sT0}, s{sT1}\ns_mul_i32 s{sT0}, s{sT0}, {IB_PER}")
                    a(f"s_sub_u32 s{sT1}, s{sG}, s{sNQ}\ns_sub_u32 s{sT1}, s{sT1}, 1\ns_and_b32 s{sT1}, s{sT1}, 3\ns_mul_i32 s{sT1}, s{sT1}, 10240")
                    a(f"s_add_u32 s{sT0}, s{sT0}, s{sT1}\ns_add_u32 s{sT0}, s{sT0}, 8192")
                    send(prev)
                    a("s_branch L_kept")
                    a.label("L_keep")
                    a(f"ds_write_b128 v{vScr}, {vr(prev,4)}\nds_write_b128 v{vScr}, {vr(prev+4,4)} offset:1024\ns_waitcnt lgkmcnt(0)")
                    a.label("L_kept")
                else:
                    a(f"s_add_u32 s{sT1}, s{sG}, {p-1}\ns_and_b32 s{sT1}, s{sT1}, 3\ns_lshl_b32 s{sT1}, s{sT1}, 1")
                    a(f"s_and_b32 s{sT0}, s2, 0xf9\ns_or_b32 s{sT0}, s{sT0}, s{sT1}\ns_mul_i32 s{sT0}, s{sT0}, {IB_PER}")
                    a(f"s_lshl_b32 s{sT1}, s{sNQ}, 11\ns_add_u32 s{sT0}, s{sT0}, s{sT1}\ns_add_u32 s{sT0}, s{sT0}, {(3-(p-1))*10240}")
                    send(prev)
                    vm.push("snd"); vm.push("snd")
            if role == "A" and p == 2 and m == MP[2] + 1:
                a(f"ds_read_b128 {vr(KEEP,4)}, v{vScr}\nds_read_b128 {vr(KEEP+4,4)}, v{vScr} offset:1024")
                lg.push("k"); lg.push("k")
            if role == "A" and p == 3 and m == 0:
                lg.wait("k")
            if role == "A" and p == 3 and m == MP[3] + 1:
                a(f"s_cmp_lg_u32 s{sNQ}, s{sG}\ns_cbranch_scc1 L_t4_a")
                a(f"s_add_u32 s{sT6}, s{sOwnBase}, 8192")
                a(ib_loads(T4, f"s{sT6}", (0, 1, 2)))
                a.label("L_t4_a")
            if role == "A" and p == 4 and m == 0:
                a(f"s_cmp_lg_u32 s{sNQ}, s{sG}\ns_cbranch_scc1 L_t4_b\ns_waitcnt vmcnt(0)")
                check_tags(T4, 24, "t4", ib_loads(T4, f"s{sT6}", (0, 1, 2)))
                for r in range(3):
                    for k in range(8):
                        a(f"v_add_f32 v{KEEP+k}, v{KEEP+k}, v{T4+8*r+k}")
                out_store(KEEP, TMP, "4")
                a.label("L_t4_b")
            if role == "A" and p == 4 and m == 8:
                a(f"s_lshl_b32 s{sT6}, s{sNQ}, 11\ns_add_u32 s{sT6}, s{sT6}, s{sOwnBase}")
                a(ib_loads(T4, f"s{sT6}", (2, 1)))
        acc = AC
        if role == "B":
            a(f"s_nop 6\nds_write_b128 v{vScr}, {vr(acc,4)}\nds_write_b128 v{vScr}, {vr(acc+4,4)} offset:1024\ns_waitcnt lgkmcnt(0)\ns_barrier")
            stamp(30)
        else:
            a(ib_loads(T4 + 16, f"s{sT6}", (0,)))
            a("s_barrier")
            stamp(30)
            a(f"ds_read_b128 {vr(TMP,4)}, v{vScr}\nds_read_b128 {vr(TMP+4,4)}, v{vScr} offset:1024\ns_waitcnt lgkmcnt(0)")
            for k in range(8):
                a(f"v_add_f32 v{acc+k}, v{acc+k}, v{TMP+k}")
            a("s_waitcnt vmcnt(0)")
            check_tags(T4, 24, "a", ib_loads(T4, f"s{sT6}", (2, 1, 0)))
            stamp(31)
            for r in range(3):
                for k in range(8):
                    a(f"v_add_f32 v{acc+k}, v{acc+k}, v{T4+8*r+k}")
            out_store(acc, TMP, f"s{sOwn}")
            a(f"s_and_b32 s{sT0}, s2, 31\ns_or_b32 s{sT0}, s{sT0}, s{sNQ}\ns_cmp_lg_u32 s{sT0}, 0\ns_cbranch_scc1 L_done")
            a(f"s_lshl_b32 s{sT0}, s{sB}, 7\ns_add_u32 s{sT0}, s{sT0}, {ws_off + E_OFF}")
            mk_srd(sF, 18, f"s{sT0}", 4)
            a(f"v_mov_b32 v20, s{sEp}\nv_mov_b32 v21, 0\ns_mov_b64 exec, 1")
            a(f"buffer_store_dword v20, v21, {srd(sF)}, 0 offen sc1\ns_mov_b64 exec, -1")

    def stamp_light(k):
        if ts:
            a(f"s_memtime s[{sTm}:{sTm+1}]\ns_waitcnt lgkmcnt(0)\nv_writelane_b32 v{vTS}, s{sTm}, {k}")

    a(f"s_cmp_eq_u32 s{sKH}, 1\ns_cbranch_scc1 L_p2b")
    a(f"s_setprio {prA}")
    stream("A")
    a("s_branch L_done")
    a.label("L_p2b")
    a(f"s_setprio {prB}")
    stream("B")
    a.label("L_done")
    if pad >= 0:
        a("s_waitcnt vmcnt(0)")
        a.label("L_pad")
        a("s_memrealtime s[98:99]\ns_waitcnt lgkmcnt(0)\ns_sub_u32 s98, s98, s100\ns_cmp_lt_u32 s98, 6000\ns_cbranch_scc1 L_pad")
    if ts:
        a("s_waitcnt vmcnt(0)")
        stamp(29)
        a(f"s_memrealtime s[98:99]\ns_waitcnt lgkmcnt(0)\nv_writelane_b32 v{vTS}, s98, 63")
        a(f"s_lshl_b32 s{sT0}, s2, 3\ns_add_u32 s{sT0}, s{sT0}, s{sWave}\ns_lshl_b32 s{sT0}, s{sT0}, 8\nv_lshlrev_b32 v20, 2, v{vLane}")
        a(f"buffer_store_dword v{vTS}, v20, {srd(sTS)}, s{sT0} offen")
    a.label("L_end")
    a("s_endpgm")
    a('.section .rodata,"a"\n.p2align 6')
    a(f".amdhsa_kernel {KNAME}")
    a(""".amdhsa_next_free_vgpr 256
.amdhsa_next_free_sgpr 102
.amdhsa_accum_offset 128
.amdhsa_group_segment_fixed_size 0
.amdhsa_kernarg_size 64
.amdhsa_user_sgpr_count 2
.amdhsa_user_sgpr_kernarg_segment_ptr 1
.amdhsa_system_sgpr_workgroup_id_x 1
.amdhsa_float_denorm_mode_32 3
.end_amdhsa_kernel""")
    probs = check_hazards(a.lines)
    for pr in probs:
        print("HAZARD", pr, file=sys.stderr)
    return HEADER + a.text()


if __name__ == "__main__":
    kw = {}
    out = "standalone__mha_block_cached__near_ridge.s"
    for x in sys.argv[1:]:
        k, v = x.split("=", 1)
        if k == "out":
            out = v
        else:
            kw[k] = int(v, 0) if v.lstrip("-").replace("0x", "").isdigit() else v
    open(out, "w").write(gen(**kw))
```
